```python
import torch

def _softmax(x, axis=-1):
    return torch.softmax(x, dim=axis)
def _gelu(x):
    return torch.nn.functional.gelu(x, approximate="tanh")
def _silu(x):
    return torch.nn.functional.silu(x)
def _sigmoid(x):
    return torch.sigmoid(x)
def _layernorm(x, axis=-1, eps=1e-5):
    m = x.mean(dim=axis, keepdim=True)
    v = x.var(dim=axis, keepdim=True, unbiased=False)
    return (x - m) / torch.sqrt(v + eps)
def _scatter_add(tgt, idx, src, axis=0):
    return tgt.clone().index_add_(axis, idx, src)
def _segment_sum(src, seg, n):
    out = torch.zeros((n,) + src.shape[1:], dtype=src.dtype)
    return out.index_add_(0, seg, src)
def _pad(x, pw):
    flat = tuple(v for pair in reversed(pw) for v in pair)
    return torch.nn.functional.pad(x, flat)

kernel_name = 'parallel_sum__gqa_block_cached__dense_activation_squared_relu__decode'

def setup_inputs():

    _w = (lambda a: (lambda t: t.to(torch.bfloat16) if t.is_floating_point() else t)(torch.as_tensor(a)))
    def _A_setup():
        B, Sq, D = 8, 1, 1024
        Hq, Hkv, Sk, Dh = 32, 4, 4096, 128
        assert Hq % Hkv == 0, (Hq, Hkv)
        return {
            "x": _w((lambda *s: torch.randn(*s, dtype=torch.bfloat16) * 0.05)(B, Sq, D)),
            "k_cache": _w((lambda *s: torch.randn(*s, dtype=torch.bfloat16) * 1.6)(B, Hkv, Sk, Dh)),
            "v_cache": _w((lambda *s: torch.randn(*s, dtype=torch.bfloat16) * 3.2)(B, Hkv, Sk, Dh)),
            "wq": _w((lambda *s: torch.randn(*s, dtype=torch.bfloat16) * 1.6)(D, Hq * Dh) * (D ** -0.5)),
            "wo": _w((lambda *s: torch.randn(*s, dtype=torch.bfloat16) * 3.2)(Hq * Dh, D) * ((Hq * Dh) ** -0.5)),
        }
    _A_in = _A_setup()

    def _B_setup():
        B, S, D, F = 8, 1, 1024, 3584
        return {
            "x": _w((lambda *s: torch.randn(*s, dtype=torch.bfloat16) * 0.05)(B, S, D)),
            "w1": _w((lambda *s: torch.randn(*s, dtype=torch.bfloat16) * 0.05)(D, F)),
            "b1": _w((lambda *s: torch.randn(*s, dtype=torch.bfloat16) * 0.4)(F)),
            "w2": _w((lambda *s: torch.randn(*s, dtype=torch.bfloat16) * 0.05)(F, D)),
            "b2": _w((lambda *s: torch.randn(*s, dtype=torch.bfloat16) * 3.2)(D)),
        }
    _B_in = _B_setup()

    return {
        "A_x": _A_in["x"],
        "A_k_cache": _A_in["k_cache"],
        "A_v_cache": _A_in["v_cache"],
        "A_wq": _A_in["wq"],
        "A_wo": _A_in["wo"],
        "B_x": _B_in["x"],
        "B_w1": _B_in["w1"],
        "B_b1": _B_in["b1"],
        "B_w2": _B_in["w2"],
        "B_b2": _B_in["b2"],
    }

def reference(A_x, A_k_cache, A_v_cache, A_wq, A_wo, B_x, B_w1, B_b1, B_w2, B_b2):
    def _A_ref(x, k_cache, v_cache, wq, wo):
        B, Sq, D = x.shape
        Hq, Dh = 32, 128
        Hkv = k_cache.shape[1]
        rep = Hq // Hkv
        q = (lambda x, *d: x.permute(*d))((x @ wq).reshape(B, Sq, Hq, Dh), 0, 2, 1, 3)
        k = (lambda x, n, axis: torch.repeat_interleave(x, n, dim=axis))(k_cache, rep, axis=1)
        v = (lambda x, n, axis: torch.repeat_interleave(x, n, dim=axis))(v_cache, rep, axis=1)
        scores = torch.einsum("bhqd,bhkd->bhqk", q, k) * (Dh ** -0.5)
        p = _softmax(scores, axis=-1)
        o = torch.einsum("bhqk,bhkd->bhqd", p, v)
        return (lambda x, *d: x.permute(*d))(o, 0, 2, 1, 3).reshape(B, Sq, Hq * Dh) @ wo

    def _B_ref(x, w1, b1, w2, b2):
        h = torch.einsum("bsd,df->bsf", x, w1) + b1
        zero = torch.zeros_like(h)
        r = torch.where(h > zero, h, zero)
        h = r * r
        out = torch.einsum("bsf,fd->bsd", h, w2) + b2
        return out

    x = A_x
    xn = _layernorm(x, axis=-1)
    return x + _A_ref(xn, A_k_cache, A_v_cache, A_wq, A_wo) + _B_ref(xn, B_w1, B_b1, B_w2, B_b2)
```

```python
NAME = "parallel_sum__gqa_block_cached__dense_activation_squared_relu__decode"
HEADER_COMMENT = """; Kernarg layout for this problem (104 bytes, ptrs only, base s[0:1]):
"""

class Asm:
    def __init__(self):
        self.lines = []
    def __call__(self, s=""):
        for l in s.split("\n"):
            self.lines.append("    " + l.strip() if l.strip() and not l.strip().endswith(":") else l.strip())
    def label(self, l):
        self.lines.append(l + ":")
    def text(self):
        return "\n".join(self.lines) + "\n"

def kernel_wrap(name, body, vgpr=256, sgpr=102, accum=None):
    if accum is None:
        accum = min(256, (vgpr + 3) // 4 * 4)
    txt = f""".globl {name}
.p2align 8
.type {name},@function
{name}:
{body}
"""
    kd = f""".amdhsa_kernel {name}
  .amdhsa_next_free_vgpr {vgpr}
  .amdhsa_next_free_sgpr {sgpr}
  .amdhsa_accum_offset {accum}
  .amdhsa_group_segment_fixed_size 0
  .amdhsa_kernarg_size 104
  .amdhsa_user_sgpr_count 2
  .amdhsa_user_sgpr_kernarg_segment_ptr 1
  .amdhsa_system_sgpr_workgroup_id_x 1
  .amdhsa_float_denorm_mode_32 3
  .amdhsa_float_denorm_mode_16_64 3
.end_amdhsa_kernel
"""
    return txt, kd

def file_wrap(launch_lines, kernels):
    s = HEADER_COMMENT
    for l in launch_lines:
        s += l + "\n"
    s += '.amdgcn_target "amdgcn-amd-amdhsa--gfx950"\n.text\n'
    for t, _ in kernels:
        s += t
    s += '.section .rodata,"a"\n.p2align 6\n'
    for i, (_, kd) in enumerate(kernels):
        if i: s += ".p2align 6\n"
        s += kd
    return s
```

```python
import sys
from asmlib import *

WS_QP, WS_HP, WS_OP, WS_ML, WS_FP, WS_SIZE = 0x10000, 0x100000, 0x200000, 0x300000, 0x400000, 0x600000
L_WQ, L_W1, L_W2, L_WO = 0, 32768, 65536, 98304
L_ORED = 0
L_XN = 131072
L_QS = L_XN + 8 * 528
L_ACT = L_QS + 8 * 272
L_MX = L_ACT + 8 * 272
L_LS = L_MX + 512
L_FR = L_LS + 512
L_END = L_FR + 1024
OOB = 0x7ffffff0
STAMP_OFF = 128 << 20

class Gen:
    def __init__(self, W=6, gq_after=14, gh_after=8, diag=False, nt=True, retry=200000):
        self.a = Asm(); self.W = W; self.diag = diag; self.nt = " nt" if nt else ""
        self.gq_after = gq_after; self.gh_after = gh_after; self.retry = retry
        self.vm = []
        self.nstamp = 0
        self.uid = 0
    def lab(self, p):
        self.uid += 1
        return f"L_{p}_{self.uid}"
    def issue(self, name, text):
        self.a(text); self.vm.append(name)
    def wait(self, name):
        i = self.vm.index(name)
        n = len(self.vm) - 1 - i
        self.a(f"s_waitcnt vmcnt({n})")
    def stamp(self):
        if self.diag:
            r = 76 + 2 * self.nstamp
            self.a(f"s_memrealtime s[{r}:{r+1}]")
            self.nstamp += 1
            assert self.nstamp <= 12

    def wave_sum(self, v, s):
        a = self.a
        for m in ("quad_perm:[1,0,3,2] row_mask:0xf", "quad_perm:[2,3,0,1] row_mask:0xf", "row_half_mirror row_mask:0xf",
                  "row_mirror row_mask:0xf", "row_bcast:15 row_mask:0xa", "row_bcast:31 row_mask:0xc"):
            a("s_nop 1")
            a(f"v_add_f32_dpp v{v}, v{v}, v{v} {m} bank_mask:0xf")
        a("s_nop 1")
        a(f"v_readlane_b32 s{s}, v{v}, 63")
        a("s_nop 1")

    def xg_all(self, op, v, t):
        a = self.a
        for sw in ("v_permlane16_swap_b32", "v_permlane32_swap_b32"):
            a(f"v_mov_b32 v{t}, v{v}")
            a("s_nop 1")
            a(f"{sw} v{v}, v{t}")
            a("s_nop 1")
            a(f"{op} v{v}, v{v}, v{t}")

    def xg_quad(self, r):
        a = self.a
        a("s_nop 1")
        a(f"v_permlane32_swap_b32 v{r}, v{r+2}")
        a(f"v_permlane32_swap_b32 v{r+1}, v{r+3}")
        a("s_nop 1")
        a(f"v_add_f32 v{r}, v{r}, v{r+2}")
        a(f"v_add_f32 v{r+1}, v{r+1}, v{r+3}")
        a("s_nop 1")
        a(f"v_permlane16_swap_b32 v{r}, v{r+1}")
        a("s_nop 1")
        a(f"v_add_f32 v{r}, v{r}, v{r+1}")

    def tag(self, dst, src):
        for i in range(4):
            self.a(f"v_and_or_b32 v{dst+i}, v{src+i}, v{self.vMASK}, s{self.sT+i}")

    def gather_check(self, name, regs, loads, t, first_wait, skipmask=None, code=0):
        a = self.a
        top = self.lab("chk"); ok = self.lab("ok")
        a(f"s_mov_b32 s70, {self.retry}")
        first_wait()
        a.label(top)
        for q in regs:
            for i in range(4):
                a(f"v_xor_b32 v{q+i}, s{self.sT+i}, v{q+i}")
        flat = [q + i for q in regs for i in range(4)]
        a(f"v_or3_b32 v{t}, v{flat[0]}, v{flat[1]}, v{flat[2]}")
        rest = flat[3:]
        while len(rest) >= 2:
            a(f"v_or3_b32 v{t}, v{t}, v{rest[0]}, v{rest[1]}"); rest = rest[2:]
        if rest:
            a(f"v_or_b32 v{t}, v{t}, v{rest[0]}")
        a(f"v_and_b32 v{t}, 0xff, v{t}")
        a(f"v_cmp_ne_u32 vcc, 0, v{t}")
        if skipmask is not None:
            a(f"s_and_b64 vcc, vcc, s[{skipmask}:{skipmask+1}]")
        a(f"s_cbranch_vccz {ok}")
        a(f"s_sub_u32 s70, s70, 1")
        if self.diag:
            a(f"s_add_u32 s75, s75, {1 << (8 * code)}")
        a(f"s_cmp_eq_u32 s70, 0")
        a(f"s_cbranch_scc1 {ok}")
        for l in loads:
            a(l)
        a("s_waitcnt vmcnt(0)")
        a(f"s_branch {top}")
        a.label(ok)

    def build(self):
        a = self.a
        nt = self.nt
        sX, sK, sV, sWQ, sW1, sW2, sWO, sWS = 8, 12, 16, 20, 24, 28, 32, 36
        sB1 = 40
        sB2p, sOUTp = 44, 46
        self.sT = sT = 48
        sTMP = 53
        sSELLO, sSELHI = 54, 55
        sLOG2E, sSCALE = 56, 57
        sK4, sK8, sK12 = 58, 59, 60
        sLO8 = 62
        sHMASK = 64
        sLDSW = 66
        vL = 0
        vLIN, vKA, vWQA, vW1A, vWOA0, vWOA1 = 1, 2, 3, 4, 5, 6
        self.vMASK = vMASK = 7
        vT0 = 8
        vPUB, vGQ, vGH, vGO, vGM, vGF, vFPUB = 48, 49, 50, 51, 52, 53, 54
        vB1, vXF, vB2 = 55, 56, 57
        vMCU, vN, vG = 58, 59, 60
        vOW = 61
        vK, vV, vACC = 64, 128, 192
        vP = 224
        vQ = 232
        vGB = 240

        a(f"""
        s_cmp_ge_u32 s2, 256
        s_cbranch_scc1 L_end
        """)
        self.stamp()
        a(f"""
        s_load_dwordx2 s[{sX}:{sX+1}], s[0:1], 0
        s_load_dwordx2 s[{sK}:{sK+1}], s[0:1], 8
        s_load_dwordx2 s[{sV}:{sV+1}], s[0:1], 16
        s_load_dwordx2 s[{sWQ}:{sWQ+1}], s[0:1], 24
        s_load_dwordx2 s[{sWO}:{sWO+1}], s[0:1], 32
        s_load_dwordx2 s[{sW1}:{sW1+1}], s[0:1], 48
        s_load_dwordx2 s[{sB1}:{sB1+1}], s[0:1], 56
        s_load_dwordx2 s[{sW2}:{sW2+1}], s[0:1], 64
        s_load_dwordx2 s[{sB2p}:{sB2p+1}], s[0:1], 72
        s_load_dwordx2 s[{sOUTp}:{sOUTp+1}], s[0:1], 80
        s_load_dwordx2 s[{sWS}:{sWS+1}], s[0:1], 96
        v_lshrrev_b32 v8, 6, v0
        v_and_b32 v{vL}, 63, v0
        v_readfirstlane_b32 s3, v8
        v_lshlrev_b32 v{vLIN}, 4, v{vL}
        v_and_b32 v{vN}, 15, v{vL}
        v_lshrrev_b32 v{vG}, 4, v{vL}
        v_lshrrev_b32 v8, 3, v{vL}
        v_and_b32 v9, 7, v{vL}
        v_lshlrev_b32 v10, 1, v{vG}
        v_xor_b32 v9, v9, v10
        v_lshlrev_b32 v9, 4, v9
        v_lshl_add_u32 v{vWQA}, v8, 13, v9
        v_mul_u32_u24 v8, 7168, v8
        v_add_u32 v{vW1A}, v8, v9
        s_and_b32 s4, s2, 63                       ; ct
        s_lshr_b32 s5, s2, 6                       ; ks
        s_lshl_b32 s6, s5, 8
        s_lshl_b32 s7, s3, 5
        s_add_u32 s6, s6, s7
        s_lshl_b32 s7, s4, 7
        s_lshl_b32 s67, s6, 13
        s_add_u32 s67, s67, s7
        s_mul_i32 s68, s6, 7168
        s_add_u32 s68, s68, s7
        s_cmp_lt_u32 s4, 56
        s_cselect_b32 s68, s68, 0
        s_cselect_b32 s{sW1+2}, {31*7168+128}, 0
        s_mov_b32 s{sW1+3}, 0x20000
        s_mov_b32 s{sWQ+2}, {31*8192+128}
        s_mov_b32 s{sWQ+3}, 0x20000
        s_mov_b32 s{sX+2}, 16384
        s_mov_b32 s{sX+3}, 0x20000
        s_lshl_b32 s69, s3, 11
        s_lshr_b32 s70, s5, 1
        s_lshl_b32 s70, s70, 10
        s_add_u32 s70, s70, s69
        s_xor_b32 s71, s70, 1024
        s_lshl_b32 s{sLDSW}, s3, 12
        s_waitcnt lgkmcnt(0)
        s_load_dword s{sT+4}, s[{sWS}:{sWS+1}], 0  ; epoch
        s_add_u32 s{sWQ}, s{sWQ}, s67
        s_addc_u32 s{sWQ+1}, s{sWQ+1}, 0
        s_add_u32 s{sW1}, s{sW1}, s68
        s_addc_u32 s{sW1+1}, s{sW1+1}, 0
        """)
        L = []
        def dma(name, srd, va, soff, lds):
            return (name, f"s_mov_b32 s{sTMP}, {soff}\ns_add_u32 m0, s{sLDSW}, {lds}\ns_nop 0\n"
                          f"buffer_load_dwordx4 v{va}, s[{srd}:{srd+3}], s{sTMP} offen{nt} lds")
        L.append(("X0", f"buffer_load_dwordx4 v[8:11], v{vLIN}, s[{sX}:{sX+3}], s70 offen"))
        L.append(("X1", f"buffer_load_dwordx4 v[12:15], v{vLIN}, s[{sX}:{sX+3}], s71 offen"))
        for m in range(4): L.append(dma(f"WQ{m}", sWQ, vWQA, m * 65536, L_WQ + m * 1024))
        for m in range(4): L.append(dma(f"W1{m}", sW1, vW1A, m * 8 * 7168, L_W1 + m * 1024))
        so = ["0", f"s{sK4}", f"s{sK8}", f"s{sK12}"]
        gq = [f"buffer_load_dwordx4 v[{vGB+4*j}:{vGB+4*j+3}], v{vGQ}, s[{sWS}:{sWS+3}], s{72+j} offen sc1" for j in range(2)]
        gh = [f"buffer_load_dwordx4 v[{vGB+8}:{vGB+11}], v{vGH}, s[{sWS}:{sWS+3}], 0 offen sc1"]
        for m in range(16):
            if m == self.gq_after:
                L.append(("GQ0", gq[0])); L.append(("GQ1", gq[1]))
            off = (m // 2) * 2048 + (m % 2) * 128
            L.append((f"K{m}", f"buffer_load_dwordx4 v[{vK+4*m}:{vK+4*m+3}], v{vKA}, s[{sK}:{sK+3}], {so[off>>12]} offen offset:{off&4095}{nt}"))
        if self.gq_after >= 16:
            L.append(("GQ0", gq[0])); L.append(("GQ1", gq[1]))
        for m in range(16):
            if m == self.gh_after:
                L.append(("B1", f"buffer_load_ushort v{vB1}, v{vB1}, s[{sB1}:{sB1+3}], 0 offen"))
                L.append(("XF", f"buffer_load_ushort v{vXF}, v{vXF}, s[{sX}:{sX+3}], 0 offen"))
                L.append(("B2", f"global_load_ushort v{vB2}, v{vB2}, s[{sB2p}:{sB2p+1}]"))
                L.append(("GH", gh[0]))
            off = m * 1024
            L.append((f"V{m}", f"buffer_load_dwordx4 v[{vV+4*m}:{vV+4*m+3}], v{vLIN}, s[{sV}:{sV+3}], {so[off>>12]} offen offset:{off&4095}{nt}"))
        for m in range(4): L.append(dma(f"W2{m}", sW2, vWOA0 + (m & 1), m * 4096, L_W2 + m * 1024))
        for m in range(4): L.append(dma(f"WO{m}", sWO, vWOA0 + (m & 1), m * 4096, L_WO + m * 1024))

        nxt = [0]
        def issue_next():
            if nxt[0] < len(L):
                self.issue(*L[nxt[0]]); nxt[0] += 1
        for _ in range(6): issue_next()

        a(f"""
        s_lshl_b32 s67, s2, 17
        s_lshl_b32 s68, s3, 14
        s_add_u32 s67, s67, s68
        s_add_u32 s{sK}, s{sK}, s67
        s_addc_u32 s{sK+1}, s{sK+1}, 0
        s_add_u32 s{sV}, s{sV}, s67
        s_addc_u32 s{sV+1}, s{sV+1}, 0
        s_mov_b32 s{sK+2}, 16384
        s_mov_b32 s{sK+3}, 0x20000
        s_mov_b32 s{sV+2}, 16384
        s_mov_b32 s{sV+3}, 0x20000
        s_mov_b32 s{sWS+2}, {WS_SIZE}
        s_mov_b32 s{sWS+3}, 0x20000
        s_mov_b32 s{sB1+2}, 7168
        s_mov_b32 s{sB1+3}, 0x20000
        s_mov_b32 s{sK4}, 4096
        s_mov_b32 s{sK8}, 8192
        s_mov_b32 s{sK12}, 12288
        s_mov_b32 s{sSELLO}, 0x05040100
        s_mov_b32 s{sSELHI}, 0x07060302
        s_mov_b32 s{sLOG2E}, 0x3fb8aa3b
        s_mov_b32 s{sSCALE}, 0x3db504f3
        s_mov_b32 s75, 0
        s_lshr_b32 s6, s2, 2
        s_and_b32 s7, s2, 3
        s_lshl_b32 s67, s7, 9
        s_lshl_b32 s68, s3, 14
        s_add_u32 s67, s67, s68
        s_lshl_b32 s68, s6, 17                     ; kg*64*2048
        s_add_u32 s68, s68, s67
        s_add_u32 s{sWO}, s{sWO}, s68
        s_addc_u32 s{sWO+1}, s{sWO+1}, 0
        s_mov_b32 s{sWO+2}, {7*2048+512}
        s_mov_b32 s{sWO+3}, 0x20000
        s_mul_i32 s68, s6, {56*2048}
        s_add_u32 s68, s68, s67
        s_cmp_lt_u32 s3, 7
        s_cselect_b32 s68, s68, 0
        s_cselect_b32 s{sW2+2}, {7*2048+512}, 0
        s_add_u32 s{sW2}, s{sW2}, s68
        s_addc_u32 s{sW2+1}, s{sW2+1}, 0
        s_mov_b32 s{sW2+3}, 0x20000
        v_mov_b32 v{vMASK}, 0xffffff00
        v_lshrrev_b32 v16, 1, v{vN}
        v_and_b32 v17, 1, v16
        v_lshlrev_b32 v17, 10, v17
        v_lshrrev_b32 v16, 1, v16
        v_lshl_add_u32 v17, v16, 8, v17
        v_and_b32 v16, 1, v{vN}
        v_lshl_add_u32 v17, v16, 6, v17
        v_lshl_add_u32 v{vKA}, v{vG}, 4, v17
        s_and_b32 s67, s3, 3
        s_lshl_b32 s67, s67, 2
        v_and_b32 v16, 31, v{vL}
        v_xor_b32 v16, s67, v16
        v_lshrrev_b32 v17, 5, v{vL}
        v_lshlrev_b32 v17, 11, v17
        v_lshl_add_u32 v{vWOA0}, v16, 4, v17
        v_xor_b32 v{vWOA1}, 32, v{vWOA0}
        v_cmp_gt_u32 s[{sLO8}:{sLO8+1}], 8, v{vN}
        v_cmp_gt_u32 s[{sHMASK}:{sHMASK+1}], 14, v{vN}
        s_and_b32 s67, s3, 3
        s_lshl_b32 s67, s67, 6
        s_lshl_b32 s68, s4, 8
        s_add_u32 s67, s67, s68                    ; (64ct+16nt)*4
        s_lshl_b32 s68, s5, 17
        s_add_u32 s68, s68, {WS_QP}
        s_mul_i32 s69, s5, {8*14336}
        s_add_u32 s69, s69, {WS_HP}
        s_cmp_lt_u32 s4, 56
        s_cselect_b32 s69, s69, {OOB}
        s_movk_i32 s74, 14336
        s_cmp_lt_u32 s3, 4
        s_cselect_b32 s68, s68, s69
        s_cselect_b32 s69, 16384, s74
        s_add_u32 s67, s67, s68
        v_mul_u32_u24 v16, s69, v{vN}
        v_lshl_add_u32 v16, v{vG}, 4, v16
        v_add_u32 v16, s67, v16
        v_mov_b32 v17, {OOB}
        v_cndmask_b32 v{vPUB}, v17, v16, s[{sLO8}:{sLO8+1}]
        s_lshr_b32 s67, s2, 3
        s_lshl_b32 s67, s67, 12                    ; (b*4+kvh)*4096
        s_lshl_b32 s68, s3, 9
        s_add_u32 s67, s67, s68
        s_add_u32 s72, s67, {WS_QP}
        s_add_u32 s73, s72, {2*131072}
        v_lshrrev_b32 v16, 5, v{vL}
        v_and_b32 v17, 31, v{vL}
        v_lshlrev_b32 v17, 4, v17
        v_lshl_add_u32 v{vGQ}, v16, 17, v17
        s_mul_i32 s67, s3, 14336
        s_mul_i32 s68, s6, 224
        s_add_u32 s67, s67, s68
        s_add_u32 s67, s67, {WS_HP}
        v_mul_u32_u24 v16, {8*14336}, v{vG}
        v_lshl_add_u32 v16, v{vN}, 4, v16
        v_add_u32 v16, s67, v16
        v_mov_b32 v17, {OOB}
        v_cndmask_b32 v{vGH}, v17, v16, s[{sHMASK}:{sHMASK+1}]
        s_mul_i32 s67, s6, 112
        v_lshl_add_u32 v16, v{vN}, 2, v{vG}
        v_lshlrev_b32 v16, 1, v16
        v_add_u32 v{vB1}, s67, v16
        v_and_b32 v16, 31, v{vL}
        v_lshlrev_b32 v16, 1, v16
        s_lshl_b32 s67, s2, 6
        v_add_u32 v{vXF}, s67, v16
        v_mov_b32 v{vOW}, v{vXF}
        v_and_b32 v{vB2}, 2047, v{vXF}
        s_lshr_b32 s67, s2, 6
        s_lshl_b32 s67, s67, 3
        s_lshl_b32 s68, s3, 5
        s_add_u32 s67, s67, s68
        s_and_b32 s68, s6, 15                      ; hl*2+dh
        s_lshl_b32 s69, s67, 12
        s_lshl_b32 s74, s68, 8
        s_add_u32 s69, s69, s74
        s_add_u32 s69, s69, {WS_OP}
        v_lshlrev_b32 v16, 12, v{vG}
        v_lshl_add_u32 v16, v{vN}, 4, v16
        v_add_u32 v{vGO}, s69, v16
        s_lshl_b32 s69, s67, 7
        s_lshr_b32 s74, s68, 1
        s_lshl_b32 s74, s74, 4
        s_add_u32 s69, s69, s74
        s_add_u32 s69, s69, {WS_ML}
        v_lshlrev_b32 v16, 7, v{vG}
        v_add_u32 v{vGM}, s69, v16
        s_lshl_b32 s67, s6, 15
        s_lshl_b32 s68, s7, 10
        s_add_u32 s67, s67, s68
        s_lshl_b32 s68, s3, 7
        s_add_u32 s67, s67, s68
        s_add_u32 s67, s67, {WS_FP}
        v_and_b32 v16, 7, v{vL}
        v_lshlrev_b32 v16, 12, v16
        v_lshrrev_b32 v17, 3, v{vN}
        v_lshl_add_u32 v16, v17, 6, v16
        v_lshl_add_u32 v16, v{vG}, 4, v16
        v_add_u32 v{vFPUB}, s67, v16
        s_lshl_b32 s67, s3, 18
        s_lshl_b32 s68, s2, 7
        s_add_u32 s67, s67, s68
        s_add_u32 s67, s67, {WS_FP}
        v_lshrrev_b32 v16, 3, v{vL}
        v_lshlrev_b32 v16, 15, v16
        v_and_b32 v17, 7, v{vL}
        v_lshl_add_u32 v16, v17, 4, v16
        v_add_u32 v{vGF}, s67, v16
        ; tag
        s_waitcnt lgkmcnt(0)
        s_mul_i32 s{sT+4}, s{sT+4}, 0x9E3779B1
        s_add_u32 s{sT+4}, s{sT+4}, 0x7F4A7C15
        s_and_b32 s{sT}, s{sT+4}, 0xff
        s_bfe_u32 s{sT+1}, s{sT+4}, 0x80008
        s_bfe_u32 s{sT+2}, s{sT+4}, 0x80010
        s_lshr_b32 s{sT+3}, s{sT+4}, 24
        """)
        for _ in range(self.W - 6): issue_next()

        def ev_ln():
            for i in range(8):
                a(f"v_lshlrev_b32 v{16+2*i}, 16, v{8+i}")
                a(f"v_and_b32 v{17+2*i}, 0xffff0000, v{8+i}")
            for i in range(8): a(f"v_add_f32 v{32+i}, v{16+i}, v{24+i}")
            for i in range(4): a(f"v_add_f32 v{32+i}, v{32+i}, v{36+i}")
            a("v_add_f32 v32, v32, v34\nv_add_f32 v33, v33, v35\nv_add_f32 v32, v32, v33")
            self.wave_sum(32, 67)
            a("v_mov_b32 v33, s67\nv_mul_f32 v33, 0x3a800000, v33   ; mean")
            a("v_sub_f32 v34, v16, v33\nv_mul_f32 v32, v34, v34")
            a("v_sub_f32 v35, v17, v33\nv_mul_f32 v36, v35, v35")
            for i in range(2, 16, 2):
                a(f"v_sub_f32 v34, v{16+i}, v33\nv_fmac_f32 v32, v34, v34")
                a(f"v_sub_f32 v35, v{17+i}, v33\nv_fmac_f32 v36, v35, v35")
            a("v_add_f32 v32, v32, v36")
            self.wave_sum(32, 67)
            a(f"""
            v_mov_b32 v34, s67
            v_mul_f32 v34, 0x3a800000, v34            ; var
            v_cvt_pk_bf16_f32 v35, v33, v34
            v_lshlrev_b32 v33, 16, v35                ; bf16(mean)
            v_and_b32 v34, 0xffff0000, v35            ; bf16(var)
            v_add_f32 v34, 0x3727c5ac, v34            ; + 1e-5
            v_cvt_pk_bf16_f32 v34, v34, v34
            v_and_b32 v34, 0xffff0000, v34
            v_sqrt_f32 v34, v34
            s_nop 0
            v_cvt_pk_bf16_f32 v34, v34, v34
            v_and_b32 v34, 0xffff0000, v34
            v_rcp_f32 v34, v34
            """)
            for i in range(8): a(f"v_sub_f32 v{16+i}, v{16+i}, v33")
            for i in range(4): a(f"v_cvt_pk_bf16_f32 v{24+i}, v{16+2*i}, v{17+2*i}")
            for i in range(4):
                a(f"v_lshlrev_b32 v{16+2*i}, 16, v{24+i}")
                a(f"v_and_b32 v{17+2*i}, 0xffff0000, v{24+i}")
            for i in range(8): a(f"v_mul_f32 v{16+i}, v{16+i}, v34")
            for i in range(4): a(f"v_cvt_pk_bf16_f32 v{24+i}, v{16+2*i}, v{17+2*i}")
            a(f"""
            s_mul_i32 s67, s3, 528
            s_add_u32 s67, s67, {L_XN}
            v_and_b32 v16, 31, v{vL}
            v_lshl_add_u32 v16, v16, 4, s67
            s_bitcmp1_b32 s5, 0
            s_cselect_b32 exec_lo, 0, -1
            s_cselect_b32 exec_hi, -1, 0
            ds_write_b128 v16, v[24:27]
            s_mov_b64 exec, -1
            """)
            a(f"""
            v_lshrrev_b32 v16, 2, v{vN}               ; r'
            v_and_b32 v17, 3, v{vN}                   ; cc
            v_lshl_add_u32 v18, v{vG}, 2, v16         ; 4g+r'
            v_lshrrev_b32 v19, 1, v18
            v_and_b32 v19, 3, v19
            v_lshlrev_b32 v19, 1, v19
            s_and_b32 s67, s3, 3
            s_lshl_b32 s67, s67, 1
            v_lshrrev_b32 v20, 1, v17
            v_add_u32 v20, s67, v20
            v_xor_b32 v20, v20, v19
            v_lshlrev_b32 v20, 4, v20
            v_lshl_add_u32 v20, v18, 7, v20
            v_and_b32 v17, 1, v17
            v_lshl_add_u32 v20, v17, 3, v20
            s_lshr_b32 s67, s3, 2
            s_lshl_b32 s67, s67, 15
            v_add_u32 v46, s67, v20
            v_and_b32 v16, 7, v{vL}
            v_mul_u32_u24 v16, 528, v16
            v_lshl_add_u32 v16, v{vG}, 3, v16
            v_add_u32 v47, {L_XN}, v16
            """)

        def ev_qh():
            a("s_waitcnt lgkmcnt(0)\ns_barrier")
            self.stamp()
            for u in range(8):
                a(f"ds_read_b64_tr_b16 v[{vACC+4*u}:{vACC+4*u+1}], v46 offset:{4096*u}")
                a(f"ds_read_b64_tr_b16 v[{vACC+4*u+2}:{vACC+4*u+3}], v46 offset:{4096*u+2048}")
                a(f"ds_read2_b64 v[{8+4*u}:{8+4*u+3}], v47 offset0:{8*u} offset1:{8*u+4}")
                if u == 3:
                    a("s_waitcnt lgkmcnt(0)")
                    for uu in range(4):
                        c = "0" if uu == 0 else "v[40:43]"
                        a(f"v_mfma_f32_16x16x32_bf16 v[40:43], v[{vACC+4*uu}:{vACC+4*uu+3}], v[{8+4*uu}:{8+4*uu+3}], {c}")
            a("s_waitcnt lgkmcnt(0)")
            for uu in range(4, 8):
                a(f"v_mfma_f32_16x16x32_bf16 v[40:43], v[{vACC+4*uu}:{vACC+4*uu+3}], v[{8+4*uu}:{8+4*uu+3}], v[40:43]")
            a("s_nop 7")
            self.tag(40, 40)
            self.issue("PUBQ", f"buffer_store_dwordx4 v[40:43], v{vPUB}, s[{sWS}:{sWS+3}], 0 offen sc1")
            self.stamp()

        def ev_gq():
            self.gather_check("GQ", [vGB, vGB + 4], gq, 8, lambda: None, code=0)
            for i in range(4): a(f"v_add_f32 v{vGB+i}, v{vGB+i}, v{vGB+4+i}")
            a(f"""
            s_mul_i32 s67, s3, 272
            s_add_u32 s67, s67, {L_QS}
            v_permlane32_swap_b32 v{vGB}, v{vGB+2}
            v_permlane32_swap_b32 v{vGB+1}, v{vGB+3}
            v_and_b32 v8, 31, v{vL}
            v_lshrrev_b32 v9, 5, v{vL}
            v_add_f32 v{vGB}, v{vGB}, v{vGB+2}
            v_add_f32 v{vGB+1}, v{vGB+1}, v{vGB+3}
            v_lshlrev_b32 v8, 3, v8
            v_lshl_add_u32 v8, v9, 2, v8
            v_add_u32 v8, s67, v8
            v_cvt_pk_bf16_f32 v9, v{vGB}, v{vGB+1}
            ds_write_b32 v8, v9
            """)

        def ev_qk():
            a(f"""
            v_and_b32 v8, 7, v{vL}
            v_mul_u32_u24 v8, 272, v8
            v_lshrrev_b32 v9, 3, v{vN}
            v_lshl_add_u32 v8, v9, 6, v8
            v_lshl_add_u32 v8, v{vG}, 4, v8
            v_add_u32 v8, {L_QS}, v8
            s_waitcnt lgkmcnt(0)
            s_barrier
            """)
            self.stamp()
            a(f"""
            ds_read_b128 v[{vQ}:{vQ+3}], v8
            ds_read_b128 v[{vQ+4}:{vQ+7}], v8 offset:128
            v_lshlrev_b32 v9, 5, v{vN}
            s_lshl_b32 s67, s3, 2
            v_add_u32 v45, {L_MX}, v9
            v_add_u32 v44, s67, v45
            s_waitcnt lgkmcnt(0)
            """)
            for t in range(8):
                a(f"v_mfma_f32_16x16x32_bf16 v[{vACC+4*t}:{vACC+4*t+3}], v[{vK+8*t}:{vK+8*t+3}], v[{vQ}:{vQ+3}], 0")
            for t in range(8):
                a(f"v_mfma_f32_16x16x32_bf16 v[{vACC+4*t}:{vACC+4*t+3}], v[{vK+8*t+4}:{vK+8*t+7}], v[{vQ+4}:{vQ+7}], v[{vACC+4*t}:{vACC+4*t+3}]")
            a("s_nop 1")
            for t in range(8):
                if t == 7: a("s_nop 0")
                a(f"v_add_f32_dpp v{8+2*t}, v{vACC+4*t+1}, v{vACC+4*t} row_ror:8 row_mask:0xf bank_mask:0xf")
                a(f"v_add_f32_dpp v{9+2*t}, v{vACC+4*t+3}, v{vACC+4*t+2} row_ror:8 row_mask:0xf bank_mask:0xf")
            for t in range(8): a(f"v_cvt_pk_bf16_f32 v{24+t}, v{8+2*t}, v{9+2*t}")
            for t in range(8):
                a(f"v_lshlrev_b32 v{8+2*t}, 16, v{24+t}")
                a(f"v_and_b32 v{9+2*t}, 0xffff0000, v{24+t}")
            for i in range(16): a(f"v_mul_f32 v{8+i}, s{sSCALE}, v{8+i}")
            for t in range(8): a(f"v_cvt_pk_bf16_f32 v{24+t}, v{8+2*t}, v{9+2*t}")
            for t in range(8):
                a(f"v_lshlrev_b32 v{8+2*t}, 16, v{24+t}")
                a(f"v_and_b32 v{9+2*t}, 0xffff0000, v{24+t}")
            a("v_max3_f32 v24, v8, v9, v10")
            for i in range(3, 15, 2): a(f"v_max3_f32 v24, v24, v{8+i}, v{9+i}")
            a("v_max_f32 v24, v24, v23")
            self.xg_all("v_max_f32", 24, 25)
            a(f"""
            ds_write_b32 v44, v24
            s_waitcnt lgkmcnt(0)
            s_barrier
            ds_read_b128 v[24:27], v45
            ds_read_b128 v[28:31], v45 offset:16
            s_waitcnt lgkmcnt(0)
            v_max3_f32 v24, v24, v25, v26
            v_max3_f32 v24, v24, v27, v28
            v_max3_f32 v24, v24, v29, v30
            v_max_f32 v{vMCU}, v24, v31
            """)
            for i in range(16): a(f"v_sub_f32 v{8+i}, v{8+i}, v{vMCU}")
            for i in range(16): a(f"v_mul_f32 v{8+i}, s{sLOG2E}, v{8+i}")
            for i in range(16): a(f"v_exp_f32 v{8+i}, v{8+i}")
            a("s_nop 0")
            for t in range(8): a(f"v_cvt_pk_bf16_f32 v{vP+t}, v{8+2*t}, v{9+2*t}")
            for i in range(8): a(f"v_add_f32 v{8+i}, v{8+i}, v{16+i}")
            for i in range(4): a(f"v_add_f32 v{8+i}, v{8+i}, v{12+i}")
            a("v_add_f32 v8, v8, v10\nv_add_f32 v9, v9, v11\nv_add_f32 v8, v8, v9")
            self.xg_all("v_add_f32", 8, 9)
            a(f"ds_write_b32 v44, v8 offset:{L_LS - L_MX}")
            self.stamp()

        def ev_vpair(m):
            u, p = m // 8, (m % 8) // 2
            ev, od = vV + 4 * (m - 1), vV + 4 * m
            for dw in range(8):
                sel = sSELHI if dw & 1 else sSELLO
                a(f"v_perm_b32 v{vK+32*u+4*dw+p}, v{od+(dw>>1)}, v{ev+(dw>>1)}, s{sel}")
            if p == 3:
                a("s_nop 1")
                for dw in range(8):
                    c = "0" if u == 0 else f"v[{vACC+4*dw}:{vACC+4*dw+3}]"
                    a(f"v_mfma_f32_16x16x32_bf16 v[{vACC+4*dw}:{vACC+4*dw+3}], v[{vK+32*u+4*dw}:{vK+32*u+4*dw+3}], v[{vP+4*u}:{vP+4*u+3}], {c}")

        def ev_gh():
            r = vGB + 8
            self.gather_check("GH", [r], gh, 8, lambda: None, skipmask=sHMASK, code=1)
            self.xg_quad(r)
            a(f"""
            v_cvt_pk_bf16_f32 v8, v{r}, v{r}
            v_and_b32 v8, 0xffff0000, v8
            v_lshlrev_b32 v9, 16, v{vB1}
            v_add_f32 v8, v8, v9
            v_cvt_pk_bf16_f32 v8, v8, v8
            v_and_b32 v8, 0xffff0000, v8
            v_max_f32 v8, 0, v8
            v_mul_f32 v8, v8, v8
            v_cvt_pk_bf16_f32 v8, v8, v8
            v_cndmask_b32 v8, 0, v8, s[{sHMASK}:{sHMASK+1}]
            ; k=4n+g ; pos = 32*(k>>5) + 4*(k&7) + ((k>>3)&3)
            v_lshl_add_u32 v9, v{vN}, 2, v{vG}
            v_and_b32 v10, 32, v9
            v_and_b32 v11, 7, v9
            v_lshl_add_u32 v10, v11, 2, v10
            v_bfe_u32 v11, v9, 3, 2
            v_add_u32 v10, v10, v11
            s_mul_i32 s67, s3, 272
            s_add_u32 s67, s67, {L_ACT}
            v_lshl_add_u32 v10, v10, 1, s67
            ds_write_b16 v10, v8
            """)
            a(f"""
            v_and_b32 v8, 7, v{vL}
            v_mul_u32_u24 v9, 528, v8
            v_lshl_add_u32 v9, v{vG}, 7, v9
            v_lshrrev_b32 v10, 3, v{vN}
            v_lshl_add_u32 v9, v10, 6, v9
            s_mul_i32 s67, s3, 4224
            v_add_u32 v40, s67, v9
            v_lshrrev_b32 v9, 5, v{vL}
            v_mul_u32_u24 v9, 528, v9
            v_and_b32 v10, 31, v{vL}
            v_lshl_add_u32 v9, v10, 4, v9
            s_mul_i32 s67, s3, 1056
            v_add_u32 v41, s67, v9
            v_mul_u32_u24 v9, 272, v8
            v_lshl_add_u32 v9, v{vG}, 4, v9
            v_add_u32 v42, {L_ACT}, v9
            v_lshrrev_b32 v9, 2, v{vN}                ; r'
            v_and_b32 v10, 3, v{vN}                   ; cc
            v_lshlrev_b32 v11, 1, v{vG}
            v_lshl_add_u32 v11, v9, 3, v11            ; row
            v_and_b32 v12, 1, v{vG}
            v_lshl_add_u32 v12, v9, 1, v12            ; f
            v_lshlrev_b32 v12, 1, v12
            s_lshl_b32 s67, s3, 2
            v_lshrrev_b32 v13, 1, v10
            v_add_u32 v13, s67, v13
            v_xor_b32 v13, v13, v12
            v_lshlrev_b32 v13, 4, v13
            v_lshl_add_u32 v13, v11, 9, v13
            v_and_b32 v10, 1, v10
            v_lshl_add_u32 v13, v10, 3, v13
            v_add_u32 v46, {L_W2}, v13
            v_xor_b32 v47, 32, v46
            v_lshl_add_u32 v9, v{vN}, 2, v{vG}
            s_mul_i32 s67, s3, 272
            s_add_u32 s67, s67, {L_ACT + 128}
            v_lshl_add_u32 v43, v9, 1, s67
            s_lshl_b32 s67, s2, 12
            s_lshl_b32 s68, s3, 10
            s_add_u32 s67, s67, s68
            s_add_u32 s67, s67, {WS_OP}
            v_add_u32 v62, s67, v{vLIN}
            s_lshl_b32 s67, s2, 7
            s_add_u32 s67, s67, {WS_ML}
            v_add_u32 v63, s67, v{vLIN}
            """)

        events = {"X1": ev_ln, "W13": ev_qh, "GQ1": ev_gq, "GH": ev_gh}
        lastk = "K15" if self.gq_after < 16 else "GQ1"
        i = 0
        while True:
            name = L[i][0]
            self.wait(name)
            issue_next()
            if name == "V15":
                while nxt[0] < len(L): issue_next()
                self.stamp()
            if name in events: events[name]()
            if name == lastk: ev_qk()
            if name[0] == "V" and int(name[1:]) % 2 == 1: ev_vpair(int(name[1:]))
            if name == "V15": break
            i += 1

        a("s_nop 7")
        for dwl in range(4):
            for r in range(4):
                a(f"v_mov_b32_dpp v{vACC+4*dwl+r}, v{vACC+16+4*dwl+r} row_shr:8 row_mask:0xf bank_mask:0xc")
        for dwl in range(4):
            a(f"ds_write_b128 v40, v[{vACC+4*dwl}:{vACC+4*dwl+3}] offset:{16*dwl}")
        go = [f"buffer_load_dwordx4 v[{vGB+4*j}:{vGB+4*j+3}], v{vGO}, s[{sWS}:{sWS+3}], {'0' if j == 0 else 's'+str(sTMP)} offen sc1" for j in range(2)]
        go += [f"buffer_load_dwordx4 v[{vGB+8+4*j}:{vGB+8+4*j+3}], v{vGM}, s[{sWS}:{sWS+3}], 0 offen offset:{512*j} sc1" for j in range(2)]
        a(f"""
        s_mov_b32 s{sTMP}, 16384
        s_waitcnt lgkmcnt(0)
        s_barrier
        s_cmp_ge_u32 s3, 4
        s_cbranch_scc1 L_stats
        """)
        for p in range(8):
            a(f"ds_read_b128 v[{8+4*p}:{8+4*p+3}], v41 offset:{4224*p}")
        a("s_waitcnt lgkmcnt(0)")
        for i in range(16): a(f"v_add_f32 v{8+i}, v{8+i}, v{24+i}")
        for i in range(8): a(f"v_add_f32 v{8+i}, v{8+i}, v{16+i}")
        for i in range(4): a(f"v_add_f32 v{8+i}, v{8+i}, v{12+i}")
        self.tag(8, 8)
        a(f"""
        buffer_store_dwordx4 v[8:11], v62, s[{sWS}:{sWS+3}], 0 offen sc1
        s_branch L_pubdone
        """)
        a.label("L_stats")
        a(f"""
        s_cmp_lg_u32 s3, 4
        s_cbranch_scc1 L_pubdone
        ds_read_b128 v[12:15], v45 offset:{L_LS - L_MX}
        ds_read_b128 v[16:19], v45 offset:{L_LS - L_MX + 16}
        v_mov_b32 v8, v{vMCU}
        v_mov_b32 v10, 0
        v_mov_b32 v11, 0
        s_waitcnt lgkmcnt(0)
        v_add_f32 v12, v12, v16
        v_add_f32 v13, v13, v17
        v_add_f32 v14, v14, v18
        v_add_f32 v15, v15, v19
        v_add_f32 v12, v12, v14
        v_add_f32 v13, v13, v15
        v_add_f32 v9, v12, v13
        """)
        self.tag(8, 8)
        a(f"""
        s_mov_b64 exec, 0xff
        buffer_store_dwordx4 v[8:11], v63, s[{sWS}:{sWS+3}], 0 offen sc1
        s_mov_b64 exec, -1
        """)
        a.label("L_pubdone")
        self.stamp()
        for l in go: a(l)
        self.gather_check("GO", [vGB, vGB + 4, vGB + 8, vGB + 12], go, 20, lambda: a("s_waitcnt vmcnt(0)"), code=2)
        self.stamp()
        m0, l0, m1, l1 = vGB + 8, vGB + 9, vGB + 12, vGB + 13
        a(f"v_max_f32 v20, v{m0}, v{m1}")
        self.xg_all("v_max_f32", 20, 21)
        a(f"""
        v_sub_f32 v{m0}, v{m0}, v20
        v_sub_f32 v{m1}, v{m1}, v20
        v_mul_f32 v{m0}, s{sLOG2E}, v{m0}
        v_mul_f32 v{m1}, s{sLOG2E}, v{m1}
        v_exp_f32 v{m0}, v{m0}
        v_exp_f32 v{m1}, v{m1}
        s_nop 0
        v_mul_f32 v20, v{m0}, v{l0}
        v_fmac_f32 v20, v{m1}, v{l1}
        """)
        for i in range(4):
            a(f"v_mul_f32 v{vGB+i}, v{vGB+i}, v{m0}")
        for i in range(4):
            a(f"v_fmac_f32 v{vGB+i}, v{vGB+4+i}, v{m1}")
        self.xg_all("v_add_f32", 20, 21)
        a("v_rcp_f32 v20, v20")
        self.xg_quad(vGB)
        a(f"""
        v_mul_f32 v{vGB}, v{vGB}, v20
        v_cvt_pk_bf16_f32 v8, v{vGB}, v{vGB}
        ds_write_b16 v43, v8
        s_waitcnt lgkmcnt(0)
        s_barrier
        """)
        for ks in range(4):
            a(f"ds_read_b128 v[{8+4*ks}:{8+4*ks+3}], v42 offset:{64*ks}")
            for t in range(2):
                r = vK + 8 * ks + 4 * t
                for e in range(2):
                    a(f"ds_read_b64_tr_b16 v[{r+2*e}:{r+2*e+1}], v{46+t} offset:{16384*ks + 512*e}")
            if ks == 1: a("s_waitcnt lgkmcnt(5)")
        a("s_waitcnt lgkmcnt(0)")
        for ks in range(4):
            for t in range(2):
                r = vK + 8 * ks + 4 * t
                c = "0" if ks == 0 else f"v[{24+4*t}:{24+4*t+3}]"
                a(f"v_mfma_f32_16x16x32_bf16 v[{24+4*t}:{24+4*t+3}], v[{r}:{r+3}], v[{8+4*ks}:{8+4*ks+3}], {c}")
        a("s_nop 7")
        for i in range(4):
            a(f"v_cndmask_b32 v{24+i}, v{28+i}, v{24+i}, s[{sLO8}:{sLO8+1}]")
        self.tag(24, 24)
        gf = [f"buffer_load_dwordx4 v[{vGB}:{vGB+3}], v{vGF}, s[{sWS}:{sWS+3}], 0 offen sc1"]
        a(f"buffer_store_dwordx4 v[24:27], v{vFPUB}, s[{sWS}:{sWS+3}], 0 offen sc1")
        self.stamp()
        a(gf[0])
        a(f"""
        v_and_b32 v8, 7, v{vL}
        v_lshl_add_u32 v8, v8, 2, v{vG}
        s_lshl_b32 s67, s3, 2
        s_add_u32 s67, s67, {L_FR}
        v_lshl_add_u32 v8, v8, 5, s67
        v_and_b32 v9, 31, v{vL}
        v_lshlrev_b32 v9, 5, v9
        v_add_u32 v9, {L_FR}, v9
        v_lshlrev_b32 v{vXF}, 16, v{vXF}
        v_lshlrev_b32 v{vB2}, 16, v{vB2}
        v_add_f32 v{vXF}, v{vXF}, v{vB2}
        """)
        self.gather_check("GF", [vGB], gf, 20, lambda: a("s_waitcnt vmcnt(0)"), code=3)
        self.stamp()
        self.xg_quad(vGB)
        a(f"""
        s_nop 1
        v_add_f32_dpp v{vGB}, v{vGB}, v{vGB} row_ror:8 row_mask:0xf bank_mask:0xf
        ds_write_b32 v8, v{vGB}
        s_waitcnt lgkmcnt(0)
        s_barrier
        s_cmp_lg_u32 s3, 0
        s_cbranch_scc1 L_fin
        ds_read_b128 v[12:15], v9
        ds_read_b128 v[16:19], v9 offset:16
        s_waitcnt lgkmcnt(0)
        v_add_f32 v12, v12, v16
        v_add_f32 v13, v13, v17
        v_add_f32 v14, v14, v18
        v_add_f32 v15, v15, v19
        v_add_f32 v12, v12, v14
        v_add_f32 v13, v13, v15
        v_add_f32 v12, v12, v13
        v_add_f32 v12, v12, v{vXF}
        v_cvt_pk_bf16_f32 v12, v12, v12
        s_mov_b32 exec_hi, 0
        global_store_short v{vOW}, v12, s[{sOUTp}:{sOUTp+1}]
        s_cmp_lg_u32 s2, 0
        s_cbranch_scc1 L_fin
        s_mov_b64 exec, 1
        v_mov_b32 v12, s{sT+4}
        v_mov_b32 v13, 0
        buffer_store_dword v12, v13, s[{sWS}:{sWS+3}], 0 offen
        """)
        a.label("L_fin")
        if self.diag:
            self.stamp()
            n = self.nstamp
            a(f"""
            s_mov_b64 exec, 1
            s_lshl_b32 s67, s2, 3
            s_add_u32 s67, s67, s3
            s_mul_i32 s67, s67, {8 * (n + 1)}
            s_add_u32 s67, s67, {STAMP_OFF}
            s_add_u32 s68, s{sWS}, s67
            s_addc_u32 s69, s{sWS+1}, 0
            v_mov_b32 v8, 0
            s_waitcnt lgkmcnt(0)
            """)
            for i in range(n):
                a(f"v_mov_b32 v10, s{76+2*i}\nv_mov_b32 v11, s{77+2*i}\nglobal_store_dwordx2 v8, v[10:11], s[68:69] offset:{8*i}\ns_nop 1")
            a(f"v_mov_b32 v10, s75\nv_mov_b32 v11, 0\nglobal_store_dwordx2 v8, v[10:11], s[68:69] offset:{8*n}")
        a.label("L_end")
        a("s_endpgm")
        k = kernel_wrap(NAME + "_kernel", a.text(), vgpr=256)
        return file_wrap([f"; @launch grid=(256,1,1) block=(512,1,1) lds={L_END}"], [k])

if __name__ == "__main__":
    import argparse
    ap = argparse.ArgumentParser()
    ap.add_argument("out"); ap.add_argument("--diag", action="store_true")
    ap.add_argument("--W", type=int, default=6); ap.add_argument("--gq", type=int, default=14); ap.add_argument("--gh", type=int, default=8)
    ap.add_argument("--nont", action="store_true"); ap.add_argument("--retry", type=int, default=200000)
    x = ap.parse_args()
    g = Gen(W=x.W, gq_after=x.gq, gh_after=x.gh, diag=x.diag, nt=not x.nont, retry=x.retry)
    open(x.out, "w").write(g.build())
    print("stamps", g.nstamp + 1 if x.diag else 0)
```

```python
import sys
from asmlib import *

WS_QP, WS_HP, WS_OP, WS_ML, WS_FP, WS_SIZE = 0x10000, 0x100000, 0x200000, 0x300000, 0x400000, 0x600000
L_WQ, L_W1, L_W2, L_WO = 0, 32768, 65536, 98304
L_ORED = 0
L_XN = 131072
L_QS = L_XN + 8 * 528
L_ACT = L_QS + 8 * 272
L_MX = L_ACT + 8 * 272
L_LS = L_MX + 512
L_FR = L_LS + 512
L_END = L_FR + 1024
OOB = 0x7ffffff0
STAMP_OFF = 128 << 20

class Gen:
    def __init__(self, W=6, gq_after=14, gh_after=8, diag=False, nt=True, retry=200000, padto=0, remap=True, err=0, pert=0.0):
        self.err = err; self.pert = pert
        self.remap = remap
        self.padto = padto
        self.a = Asm(); self.W = W; self.diag = diag; self.nt = " nt" if nt else ""
        self.gq_after = gq_after; self.gh_after = gh_after; self.retry = retry
        self.vm = []
        self.nstamp = 0
        self.uid = 0
    def lab(self, p):
        self.uid += 1
        return f"L_{p}_{self.uid}"
    def issue(self, name, text):
        self.a(text); self.vm.append(name)
    def wait(self, name):
        i = self.vm.index(name)
        n = len(self.vm) - 1 - i
        self.a(f"s_waitcnt vmcnt({n})")
    def stamp(self):
        if self.diag:
            r = 76 + 2 * self.nstamp
            self.a(f"s_memrealtime s[{r}:{r+1}]")
            self.nstamp += 1
            assert self.nstamp <= 12

    def wave_sum(self, v, s):
        a = self.a
        for m in ("quad_perm:[1,0,3,2] row_mask:0xf", "quad_perm:[2,3,0,1] row_mask:0xf", "row_half_mirror row_mask:0xf",
                  "row_mirror row_mask:0xf", "row_bcast:15 row_mask:0xa", "row_bcast:31 row_mask:0xc"):
            a("s_nop 1")
            a(f"v_add_f32_dpp v{v}, v{v}, v{v} {m} bank_mask:0xf")
        a("s_nop 1")
        a(f"v_readlane_b32 s{s}, v{v}, 63")
        a("s_nop 1")

    def xg_all(self, op, v, t):
        a = self.a
        for sw in ("v_permlane16_swap_b32", "v_permlane32_swap_b32"):
            a(f"v_mov_b32 v{t}, v{v}")
            a("s_nop 1")
            a(f"{sw} v{v}, v{t}")
            a("s_nop 1")
            a(f"{op} v{v}, v{v}, v{t}")

    def xg_quad(self, r):
        a = self.a
        a("s_nop 1")
        a(f"v_permlane32_swap_b32 v{r}, v{r+2}")
        a(f"v_permlane32_swap_b32 v{r+1}, v{r+3}")
        a("s_nop 1")
        a(f"v_add_f32 v{r}, v{r}, v{r+2}")
        a(f"v_add_f32 v{r+1}, v{r+1}, v{r+3}")
        a("s_nop 1")
        a(f"v_permlane16_swap_b32 v{r}, v{r+1}")
        a("s_nop 1")
        a(f"v_add_f32 v{r}, v{r}, v{r+1}")

    def tag(self, dst, src):
        for i in range(4):
            self.a(f"v_and_or_b32 v{dst+i}, v{src+i}, v{self.vMASK}, s{self.sT+i}")

    def gather_check(self, name, regs, loads, t, first_wait, skipmask=None, code=0):
        a = self.a
        top = self.lab("chk"); ok = self.lab("ok")
        a(f"s_mov_b32 s70, {self.retry}")
        first_wait()
        a.label(top)
        for q in regs:
            for i in range(4):
                a(f"v_xor_b32 v{q+i}, s{self.sT+i}, v{q+i}")
        flat = [q + i for q in regs for i in range(4)]
        a(f"v_or3_b32 v{t}, v{flat[0]}, v{flat[1]}, v{flat[2]}")
        rest = flat[3:]
        while len(rest) >= 2:
            a(f"v_or3_b32 v{t}, v{t}, v{rest[0]}, v{rest[1]}"); rest = rest[2:]
        if rest:
            a(f"v_or_b32 v{t}, v{t}, v{rest[0]}")
        a(f"v_and_b32 v{t}, 0xff, v{t}")
        a(f"v_cmp_ne_u32 vcc, 0, v{t}")
        if skipmask is not None:
            a(f"s_and_b64 vcc, vcc, s[{skipmask}:{skipmask+1}]")
        a(f"s_cbranch_vccz {ok}")
        a(f"s_sub_u32 s70, s70, 1")
        if self.diag:
            a(f"s_add_u32 s75, s75, {1 << (8 * code)}")
        a(f"s_cmp_eq_u32 s70, 0")
        a(f"s_cbranch_scc1 {ok}")
        for l in loads:
            a(l)
        a("s_waitcnt vmcnt(0)")
        a(f"s_branch {top}")
        a.label(ok)

    def build(self):
        a = self.a
        nt = self.nt
        sX, sK, sV, sWQ, sW1, sW2, sWO, sWS = 8, 12, 16, 20, 24, 28, 32, 36
        sB1 = 40
        sB2p, sOUTp = 44, 46
        self.sT = sT = 48
        sTMP = 53
        sSELLO, sSELHI = 54, 55
        sLOG2E, sSCALE = 56, 57
        sK4, sK8, sK12 = 58, 59, 60
        sLO8 = 62
        sHMASK = 64
        sLDSW = 66
        vL = 0
        vLIN, vKA, vWQA, vW1A, vWOA0, vWOA1 = 1, 2, 3, 4, 5, 6
        self.vMASK = vMASK = 7
        vT0 = 8
        vPUB, vGQ, vGH, vGO, vGM, vGF, vFPUB = 48, 49, 50, 51, 52, 53, 54
        vB1, vXF, vB2 = 55, 56, 57
        vMCU, vN, vG = 58, 59, 60
        vOW = 61
        vK, vV, vACC = 64, 128, 192
        vP = 224
        vQ = 232
        vGB = 240

        a(f"""
        s_cmp_ge_u32 s2, 256
        s_cbranch_scc1 L_end
        """)
        if self.padto: a("s_memrealtime s[98:99]")
        if self.remap:
            a("s_and_b32 s3, s2, 7\ns_lshl_b32 s3, s3, 5\ns_lshr_b32 s2, s2, 3\ns_or_b32 s2, s2, s3")
        self.stamp()
        a(f"""
        s_load_dwordx2 s[{sX}:{sX+1}], s[0:1], 0
        s_load_dwordx2 s[{sK}:{sK+1}], s[0:1], 8
        s_load_dwordx2 s[{sV}:{sV+1}], s[0:1], 16
        s_load_dwordx2 s[{sWQ}:{sWQ+1}], s[0:1], 24
        s_load_dwordx2 s[{sWO}:{sWO+1}], s[0:1], 32
        s_load_dwordx2 s[{sW1}:{sW1+1}], s[0:1], 48
        s_load_dwordx2 s[{sB1}:{sB1+1}], s[0:1], 56
        s_load_dwordx2 s[{sW2}:{sW2+1}], s[0:1], 64
        s_load_dwordx2 s[{sB2p}:{sB2p+1}], s[0:1], 72
        s_load_dwordx2 s[{sOUTp}:{sOUTp+1}], s[0:1], 80
        s_load_dwordx2 s[{sWS}:{sWS+1}], s[0:1], 96
        v_lshrrev_b32 v8, 6, v0
        v_and_b32 v{vL}, 63, v0
        v_readfirstlane_b32 s3, v8
        v_lshlrev_b32 v{vLIN}, 4, v{vL}
        v_and_b32 v{vN}, 15, v{vL}
        v_lshrrev_b32 v{vG}, 4, v{vL}
        v_lshrrev_b32 v8, 3, v{vL}
        v_and_b32 v9, 7, v{vL}
        v_lshlrev_b32 v10, 1, v{vG}
        v_xor_b32 v9, v9, v10
        v_lshlrev_b32 v9, 4, v9
        v_lshl_add_u32 v{vWQA}, v8, 13, v9
        v_mul_u32_u24 v8, 7168, v8
        v_add_u32 v{vW1A}, v8, v9
        s_and_b32 s4, s2, 63                       ; ct
        s_lshr_b32 s5, s2, 6                       ; ks
        s_lshl_b32 s6, s5, 8
        s_lshl_b32 s7, s3, 5
        s_add_u32 s6, s6, s7
        s_lshl_b32 s7, s4, 7
        s_lshl_b32 s67, s6, 13
        s_add_u32 s67, s67, s7
        s_mul_i32 s68, s6, 7168
        s_add_u32 s68, s68, s7
        s_cmp_lt_u32 s4, 56
        s_cselect_b32 s68, s68, 0
        s_cselect_b32 s{sW1+2}, {31*7168+128}, 0
        s_mov_b32 s{sW1+3}, 0x20000
        s_mov_b32 s{sWQ+2}, {31*8192+128}
        s_mov_b32 s{sWQ+3}, 0x20000
        s_mov_b32 s{sX+2}, 16384
        s_mov_b32 s{sX+3}, 0x20000
        s_lshl_b32 s69, s3, 11
        s_lshr_b32 s70, s5, 1
        s_lshl_b32 s70, s70, 10
        s_add_u32 s70, s70, s69
        s_xor_b32 s71, s70, 1024
        s_lshl_b32 s{sLDSW}, s3, 12
        s_waitcnt lgkmcnt(0)
        s_load_dword s{sT+4}, s[{sWS}:{sWS+1}], 0  ; epoch
        s_add_u32 s{sWQ}, s{sWQ}, s67
        s_addc_u32 s{sWQ+1}, s{sWQ+1}, 0
        s_add_u32 s{sW1}, s{sW1}, s68
        s_addc_u32 s{sW1+1}, s{sW1+1}, 0
        """)
        L = []
        def dma(name, srd, va, soff, lds):
            return (name, f"s_mov_b32 s{sTMP}, {soff}\ns_add_u32 m0, s{sLDSW}, {lds}\ns_nop 0\n"
                          f"buffer_load_dwordx4 v{va}, s[{srd}:{srd+3}], s{sTMP} offen{nt} lds")
        L.append(("X0", f"buffer_load_dwordx4 v[8:11], v{vLIN}, s[{sX}:{sX+3}], s70 offen"))
        L.append(("X1", f"buffer_load_dwordx4 v[12:15], v{vLIN}, s[{sX}:{sX+3}], s71 offen"))
        for m in range(4): L.append(dma(f"WQ{m}", sWQ, vWQA, m * 65536, L_WQ + m * 1024))
        for m in range(4): L.append(dma(f"W1{m}", sW1, vW1A, m * 8 * 7168, L_W1 + m * 1024))
        so = ["0", f"s{sK4}", f"s{sK8}", f"s{sK12}"]
        gq = [f"buffer_load_dwordx4 v[{vGB+4*j}:{vGB+4*j+3}], v{vGQ}, s[{sWS}:{sWS+3}], s{72+j} offen sc1" for j in range(2)]
        gh = [f"buffer_load_dwordx4 v[{vGB+8}:{vGB+11}], v{vGH}, s[{sWS}:{sWS+3}], 0 offen sc1"]
        for m in range(16):
            if m == self.gq_after:
                L.append(("GQ0", gq[0])); L.append(("GQ1", gq[1]))
            off = (m // 2) * 2048 + (m % 2) * 128
            L.append((f"K{m}", f"buffer_load_dwordx4 v[{vK+4*m}:{vK+4*m+3}], v{vKA}, s[{sK}:{sK+3}], {so[off>>12]} offen offset:{off&4095}{nt}"))
        if self.gq_after >= 16:
            L.append(("GQ0", gq[0])); L.append(("GQ1", gq[1]))
        for m in range(16):
            if m == self.gh_after:
                L.append(("B1", f"buffer_load_ushort v{vB1}, v{vB1}, s[{sB1}:{sB1+3}], 0 offen"))
                L.append(("XF", f"buffer_load_ushort v{vXF}, v{vXF}, s[{sX}:{sX+3}], 0 offen"))
                L.append(("B2", f"global_load_ushort v{vB2}, v{vB2}, s[{sB2p}:{sB2p+1}]"))
                L.append(("GH", gh[0]))
            off = m * 1024
            L.append((f"V{m}", f"buffer_load_dwordx4 v[{vV+4*m}:{vV+4*m+3}], v{vLIN}, s[{sV}:{sV+3}], {so[off>>12]} offen offset:{off&4095}{nt}"))
        for m in range(4): L.append(dma(f"W2{m}", sW2, vWOA0 + (m & 1), m * 4096, L_W2 + m * 1024))
        for m in range(4): L.append(dma(f"WO{m}", sWO, vWOA0 + (m & 1), m * 4096, L_WO + m * 1024))

        nxt = [0]
        def issue_next():
            if nxt[0] < len(L):
                self.issue(*L[nxt[0]]); nxt[0] += 1
        for _ in range(6): issue_next()

        a(f"""
        s_lshl_b32 s67, s2, 17
        s_lshl_b32 s68, s3, 14
        s_add_u32 s67, s67, s68
        s_add_u32 s{sK}, s{sK}, s67
        s_addc_u32 s{sK+1}, s{sK+1}, 0
        s_add_u32 s{sV}, s{sV}, s67
        s_addc_u32 s{sV+1}, s{sV+1}, 0
        s_mov_b32 s{sK+2}, 16384
        s_mov_b32 s{sK+3}, 0x20000
        s_mov_b32 s{sV+2}, 16384
        s_mov_b32 s{sV+3}, 0x20000
        s_mov_b32 s{sWS+2}, {WS_SIZE}
        s_mov_b32 s{sWS+3}, 0x20000
        s_mov_b32 s{sB1+2}, 7168
        s_mov_b32 s{sB1+3}, 0x20000
        s_mov_b32 s{sK4}, 4096
        s_mov_b32 s{sK8}, 8192
        s_mov_b32 s{sK12}, 12288
        s_mov_b32 s{sSELLO}, 0x05040100
        s_mov_b32 s{sSELHI}, 0x07060302
        s_mov_b32 s{sLOG2E}, 0x3fb8aa3b
        s_mov_b32 s{sSCALE}, 0x3db504f3
        s_mov_b32 s75, 0
        s_lshr_b32 s6, s2, 2
        s_and_b32 s7, s2, 3
        s_lshl_b32 s67, s7, 9
        s_lshl_b32 s68, s3, 14
        s_add_u32 s67, s67, s68
        s_lshl_b32 s68, s6, 17                     ; kg*64*2048
        s_add_u32 s68, s68, s67
        s_add_u32 s{sWO}, s{sWO}, s68
        s_addc_u32 s{sWO+1}, s{sWO+1}, 0
        s_mov_b32 s{sWO+2}, {7*2048+512}
        s_mov_b32 s{sWO+3}, 0x20000
        s_mul_i32 s68, s6, {56*2048}
        s_add_u32 s68, s68, s67
        s_cmp_lt_u32 s3, 7
        s_cselect_b32 s68, s68, 0
        s_cselect_b32 s{sW2+2}, {7*2048+512}, 0
        s_add_u32 s{sW2}, s{sW2}, s68
        s_addc_u32 s{sW2+1}, s{sW2+1}, 0
        s_mov_b32 s{sW2+3}, 0x20000
        v_mov_b32 v{vMASK}, 0xffffff00
        v_lshrrev_b32 v16, 1, v{vN}
        v_and_b32 v17, 1, v16
        v_lshlrev_b32 v17, 10, v17
        v_lshrrev_b32 v16, 1, v16
        v_lshl_add_u32 v17, v16, 8, v17
        v_and_b32 v16, 1, v{vN}
        v_lshl_add_u32 v17, v16, 6, v17
        v_lshl_add_u32 v{vKA}, v{vG}, 4, v17
        s_and_b32 s67, s3, 3
        s_lshl_b32 s67, s67, 2
        v_and_b32 v16, 31, v{vL}
        v_xor_b32 v16, s67, v16
        v_lshrrev_b32 v17, 5, v{vL}
        v_lshlrev_b32 v17, 11, v17
        v_lshl_add_u32 v{vWOA0}, v16, 4, v17
        v_xor_b32 v{vWOA1}, 32, v{vWOA0}
        v_cmp_gt_u32 s[{sLO8}:{sLO8+1}], 8, v{vN}
        v_cmp_gt_u32 s[{sHMASK}:{sHMASK+1}], 14, v{vN}
        s_and_b32 s67, s3, 3
        s_lshl_b32 s67, s67, 6
        s_lshl_b32 s68, s4, 8
        s_add_u32 s67, s67, s68                    ; (64ct+16nt)*4
        s_lshl_b32 s68, s5, 17
        s_add_u32 s68, s68, {WS_QP}
        s_mul_i32 s69, s5, {8*14336}
        s_add_u32 s69, s69, {WS_HP}
        s_cmp_lt_u32 s4, 56
        s_cselect_b32 s69, s69, {OOB}
        s_movk_i32 s74, 14336
        s_cmp_lt_u32 s3, 4
        s_cselect_b32 s68, s68, s69
        s_cselect_b32 s69, 16384, s74
        s_add_u32 s67, s67, s68
        v_mul_u32_u24 v16, s69, v{vN}
        v_lshl_add_u32 v16, v{vG}, 4, v16
        v_add_u32 v16, s67, v16
        v_mov_b32 v17, {OOB}
        v_cndmask_b32 v{vPUB}, v17, v16, s[{sLO8}:{sLO8+1}]
        s_lshr_b32 s67, s2, 3
        s_lshl_b32 s67, s67, 12                    ; (b*4+kvh)*4096
        s_lshl_b32 s68, s3, 9
        s_add_u32 s67, s67, s68
        s_add_u32 s72, s67, {WS_QP}
        s_add_u32 s73, s72, {2*131072}
        v_lshrrev_b32 v16, 5, v{vL}
        v_and_b32 v17, 31, v{vL}
        v_lshlrev_b32 v17, 4, v17
        v_lshl_add_u32 v{vGQ}, v16, 17, v17
        s_mul_i32 s67, s3, 14336
        s_mul_i32 s68, s6, 224
        s_add_u32 s67, s67, s68
        s_add_u32 s67, s67, {WS_HP}
        v_mul_u32_u24 v16, {8*14336}, v{vG}
        v_lshl_add_u32 v16, v{vN}, 4, v16
        v_add_u32 v16, s67, v16
        v_mov_b32 v17, {OOB}
        v_cndmask_b32 v{vGH}, v17, v16, s[{sHMASK}:{sHMASK+1}]
        s_mul_i32 s67, s6, 112
        v_lshl_add_u32 v16, v{vN}, 2, v{vG}
        v_lshlrev_b32 v16, 1, v16
        v_add_u32 v{vB1}, s67, v16
        v_and_b32 v16, 31, v{vL}
        v_lshlrev_b32 v16, 1, v16
        s_lshl_b32 s67, s2, 6
        v_add_u32 v{vXF}, s67, v16
        v_mov_b32 v{vOW}, v{vXF}
        v_and_b32 v{vB2}, 2047, v{vXF}
        s_lshr_b32 s67, s2, 6
        s_lshl_b32 s67, s67, 3
        s_lshl_b32 s68, s3, 5
        s_add_u32 s67, s67, s68
        s_and_b32 s68, s6, 15                      ; hl*2+dh
        s_lshl_b32 s69, s67, 12
        s_lshl_b32 s74, s68, 8
        s_add_u32 s69, s69, s74
        s_add_u32 s69, s69, {WS_OP}
        v_lshlrev_b32 v16, 12, v{vG}
        v_lshl_add_u32 v16, v{vN}, 4, v16
        v_add_u32 v{vGO}, s69, v16
        s_lshl_b32 s69, s67, 7
        s_lshr_b32 s74, s68, 1
        s_lshl_b32 s74, s74, 4
        s_add_u32 s69, s69, s74
        s_add_u32 s69, s69, {WS_ML}
        v_lshlrev_b32 v16, 7, v{vG}
        v_add_u32 v{vGM}, s69, v16
        s_lshl_b32 s67, s6, 15
        s_lshl_b32 s68, s7, 10
        s_add_u32 s67, s67, s68
        s_lshl_b32 s68, s3, 7
        s_add_u32 s67, s67, s68
        s_add_u32 s67, s67, {WS_FP}
        v_and_b32 v16, 7, v{vL}
        v_lshlrev_b32 v16, 12, v16
        v_lshrrev_b32 v17, 3, v{vN}
        v_lshl_add_u32 v16, v17, 6, v16
        v_lshl_add_u32 v16, v{vG}, 4, v16
        v_add_u32 v{vFPUB}, s67, v16
        s_lshl_b32 s67, s3, 18
        s_lshl_b32 s68, s2, 7
        s_add_u32 s67, s67, s68
        s_add_u32 s67, s67, {WS_FP}
        v_lshrrev_b32 v16, 3, v{vL}
        v_lshlrev_b32 v16, 15, v16
        v_and_b32 v17, 7, v{vL}
        v_lshl_add_u32 v16, v17, 4, v16
        v_add_u32 v{vGF}, s67, v16
        ; tag
        s_waitcnt lgkmcnt(0)
        s_mul_i32 s{sT+4}, s{sT+4}, 0x9E3779B1
        s_add_u32 s{sT+4}, s{sT+4}, 0x7F4A7C15
        s_and_b32 s{sT}, s{sT+4}, 0xff
        s_bfe_u32 s{sT+1}, s{sT+4}, 0x80008
        s_bfe_u32 s{sT+2}, s{sT+4}, 0x80010
        s_lshr_b32 s{sT+3}, s{sT+4}, 24
        """)
        for _ in range(self.W - 6): issue_next()

        def ev_ln():
            for i in range(8):
                a(f"v_lshlrev_b32 v{16+2*i}, 16, v{8+i}")
                a(f"v_and_b32 v{17+2*i}, 0xffff0000, v{8+i}")
            for i in range(8): a(f"v_add_f32 v{32+i}, v{16+i}, v{24+i}")
            for i in range(4): a(f"v_add_f32 v{32+i}, v{32+i}, v{36+i}")
            a("v_add_f32 v32, v32, v34\nv_add_f32 v33, v33, v35\nv_add_f32 v32, v32, v33")
            self.wave_sum(32, 67)
            a("v_mov_b32 v33, s67\nv_mul_f32 v33, 0x3a800000, v33   ; mean")
            a("v_sub_f32 v34, v16, v33\nv_mul_f32 v32, v34, v34")
            a("v_sub_f32 v35, v17, v33\nv_mul_f32 v36, v35, v35")
            for i in range(2, 16, 2):
                a(f"v_sub_f32 v34, v{16+i}, v33\nv_fmac_f32 v32, v34, v34")
                a(f"v_sub_f32 v35, v{17+i}, v33\nv_fmac_f32 v36, v35, v35")
            a("v_add_f32 v32, v32, v36")
            self.wave_sum(32, 67)
            a(f"""
            v_mov_b32 v34, s67
            v_mul_f32 v34, 0x3a800000, v34            ; var
            v_cvt_pk_bf16_f32 v35, v33, v34
            v_lshlrev_b32 v33, 16, v35                ; bf16(mean)
            v_and_b32 v34, 0xffff0000, v35            ; bf16(var)
            v_add_f32 v34, 0x3727c5ac, v34            ; + 1e-5
            v_cvt_pk_bf16_f32 v34, v34, v34
            v_and_b32 v34, 0xffff0000, v34
            v_sqrt_f32 v34, v34
            s_nop 0
            v_cvt_pk_bf16_f32 v34, v34, v34
            v_and_b32 v34, 0xffff0000, v34
            v_rcp_f32 v34, v34
            """)
            for i in range(8): a(f"v_sub_f32 v{16+i}, v{16+i}, v33")
            for i in range(4): a(f"v_cvt_pk_bf16_f32 v{24+i}, v{16+2*i}, v{17+2*i}")
            for i in range(4):
                a(f"v_lshlrev_b32 v{16+2*i}, 16, v{24+i}")
                a(f"v_and_b32 v{17+2*i}, 0xffff0000, v{24+i}")
            for i in range(8): a(f"v_mul_f32 v{16+i}, v{16+i}, v34")
            for i in range(4): a(f"v_cvt_pk_bf16_f32 v{24+i}, v{16+2*i}, v{17+2*i}")
            a(f"""
            s_mul_i32 s67, s3, 528
            s_add_u32 s67, s67, {L_XN}
            v_and_b32 v16, 31, v{vL}
            v_lshl_add_u32 v16, v16, 4, s67
            s_bitcmp1_b32 s5, 0
            s_cselect_b32 exec_lo, 0, -1
            s_cselect_b32 exec_hi, -1, 0
            ds_write_b128 v16, v[24:27]
            s_mov_b64 exec, -1
            """)
            a(f"""
            v_lshrrev_b32 v16, 2, v{vN}               ; r'
            v_and_b32 v17, 3, v{vN}                   ; cc
            v_lshl_add_u32 v18, v{vG}, 2, v16         ; 4g+r'
            v_lshrrev_b32 v19, 1, v18
            v_and_b32 v19, 3, v19
            v_lshlrev_b32 v19, 1, v19
            s_and_b32 s67, s3, 3
            s_lshl_b32 s67, s67, 1
            v_lshrrev_b32 v20, 1, v17
            v_add_u32 v20, s67, v20
            v_xor_b32 v20, v20, v19
            v_lshlrev_b32 v20, 4, v20
            v_lshl_add_u32 v20, v18, 7, v20
            v_and_b32 v17, 1, v17
            v_lshl_add_u32 v20, v17, 3, v20
            s_lshr_b32 s67, s3, 2
            s_lshl_b32 s67, s67, 15
            v_add_u32 v46, s67, v20
            v_and_b32 v16, 7, v{vL}
            v_mul_u32_u24 v16, 528, v16
            v_lshl_add_u32 v16, v{vG}, 3, v16
            v_add_u32 v47, {L_XN}, v16
            """)

        def ev_qh():
            a("s_waitcnt lgkmcnt(0)\ns_barrier")
            self.stamp()
            for u in range(8):
                a(f"ds_read_b64_tr_b16 v[{vACC+4*u}:{vACC+4*u+1}], v46 offset:{4096*u}")
                a(f"ds_read_b64_tr_b16 v[{vACC+4*u+2}:{vACC+4*u+3}], v46 offset:{4096*u+2048}")
                a(f"ds_read2_b64 v[{8+4*u}:{8+4*u+3}], v47 offset0:{8*u} offset1:{8*u+4}")
                if u == 3:
                    a("s_waitcnt lgkmcnt(0)")
                    for uu in range(4):
                        c = "0" if uu == 0 else "v[40:43]"
                        a(f"v_mfma_f32_16x16x32_bf16 v[40:43], v[{vACC+4*uu}:{vACC+4*uu+3}], v[{8+4*uu}:{8+4*uu+3}], {c}")
            a("s_waitcnt lgkmcnt(0)")
            for uu in range(4, 8):
                a(f"v_mfma_f32_16x16x32_bf16 v[40:43], v[{vACC+4*uu}:{vACC+4*uu+3}], v[{8+4*uu}:{8+4*uu+3}], v[40:43]")
            a("s_nop 7")
            self.tag(40, 40)
            self.issue("PUBQ", f"buffer_store_dwordx4 v[40:43], v{vPUB}, s[{sWS}:{sWS+3}], 0 offen sc1")
            self.stamp()

        def ev_gq():
            self.gather_check("GQ", [vGB, vGB + 4], gq, 8, lambda: None, code=0)
            for i in range(4): a(f"v_add_f32 v{vGB+i}, v{vGB+i}, v{vGB+4+i}")
            a(f"""
            s_mul_i32 s67, s3, 272
            s_add_u32 s67, s67, {L_QS}
            v_permlane32_swap_b32 v{vGB}, v{vGB+2}
            v_permlane32_swap_b32 v{vGB+1}, v{vGB+3}
            v_and_b32 v8, 31, v{vL}
            v_lshrrev_b32 v9, 5, v{vL}
            v_add_f32 v{vGB}, v{vGB}, v{vGB+2}
            v_add_f32 v{vGB+1}, v{vGB+1}, v{vGB+3}
            v_lshlrev_b32 v8, 3, v8
            v_lshl_add_u32 v8, v9, 2, v8
            v_add_u32 v8, s67, v8
            v_cvt_pk_bf16_f32 v9, v{vGB}, v{vGB+1}
            ds_write_b32 v8, v9
            """)

        def ev_qk():
            a(f"""
            v_and_b32 v8, 7, v{vL}
            v_mul_u32_u24 v8, 272, v8
            v_lshrrev_b32 v9, 3, v{vN}
            v_lshl_add_u32 v8, v9, 6, v8
            v_lshl_add_u32 v8, v{vG}, 4, v8
            v_add_u32 v8, {L_QS}, v8
            s_waitcnt lgkmcnt(0)
            s_barrier
            """)
            self.stamp()
            a(f"""
            ds_read_b128 v[{vQ}:{vQ+3}], v8
            ds_read_b128 v[{vQ+4}:{vQ+7}], v8 offset:128
            v_lshlrev_b32 v9, 5, v{vN}
            s_lshl_b32 s67, s3, 2
            v_add_u32 v45, {L_MX}, v9
            v_add_u32 v44, s67, v45
            s_waitcnt lgkmcnt(0)
            """)
            for t in range(8):
                a(f"v_mfma_f32_16x16x32_bf16 v[{vACC+4*t}:{vACC+4*t+3}], v[{vK+8*t}:{vK+8*t+3}], v[{vQ}:{vQ+3}], 0")
            for t in range(8):
                a(f"v_mfma_f32_16x16x32_bf16 v[{vACC+4*t}:{vACC+4*t+3}], v[{vK+8*t+4}:{vK+8*t+7}], v[{vQ+4}:{vQ+7}], v[{vACC+4*t}:{vACC+4*t+3}]")
            a("s_nop 1")
            for t in range(8):
                if t == 7: a("s_nop 0")
                a(f"v_add_f32_dpp v{8+2*t}, v{vACC+4*t+1}, v{vACC+4*t} row_ror:8 row_mask:0xf bank_mask:0xf")
                a(f"v_add_f32_dpp v{9+2*t}, v{vACC+4*t+3}, v{vACC+4*t+2} row_ror:8 row_mask:0xf bank_mask:0xf")
            if self.err < 1:
              for t in range(8): a(f"v_cvt_pk_bf16_f32 v{24+t}, v{8+2*t}, v{9+2*t}")
              for t in range(8):
                a(f"v_lshlrev_b32 v{8+2*t}, 16, v{24+t}")
                a(f"v_and_b32 v{9+2*t}, 0xffff0000, v{24+t}")
            for i in range(16): a(f"v_mul_f32 v{8+i}, s{sSCALE}, v{8+i}")
            for t in range(8): a(f"v_cvt_pk_bf16_f32 v{24+t}, v{8+2*t}, v{9+2*t}")
            for t in range(8):
                a(f"v_lshlrev_b32 v{8+2*t}, 16, v{24+t}")
                a(f"v_and_b32 v{9+2*t}, 0xffff0000, v{24+t}")
            a("v_max3_f32 v24, v8, v9, v10")
            for i in range(3, 15, 2): a(f"v_max3_f32 v24, v24, v{8+i}, v{9+i}")
            a("v_max_f32 v24, v24, v23")
            self.xg_all("v_max_f32", 24, 25)
            a(f"""
            ds_write_b32 v44, v24
            s_waitcnt lgkmcnt(0)
            s_barrier
            ds_read_b128 v[24:27], v45
            ds_read_b128 v[28:31], v45 offset:16
            s_waitcnt lgkmcnt(0)
            v_max3_f32 v24, v24, v25, v26
            v_max3_f32 v24, v24, v27, v28
            v_max3_f32 v24, v24, v29, v30
            v_max_f32 v{vMCU}, v24, v31
            """)
            for i in range(16): a(f"v_sub_f32 v{8+i}, v{8+i}, v{vMCU}")
            for i in range(16): a(f"v_mul_f32 v{8+i}, s{sLOG2E}, v{8+i}")
            for i in range(16): a(f"v_exp_f32 v{8+i}, v{8+i}")
            a("s_nop 0")
            for t in range(8): a(f"v_cvt_pk_bf16_f32 v{vP+t}, v{8+2*t}, v{9+2*t}")
            for i in range(8): a(f"v_add_f32 v{8+i}, v{8+i}, v{16+i}")
            for i in range(4): a(f"v_add_f32 v{8+i}, v{8+i}, v{12+i}")
            a("v_add_f32 v8, v8, v10\nv_add_f32 v9, v9, v11\nv_add_f32 v8, v8, v9")
            self.xg_all("v_add_f32", 8, 9)
            a(f"ds_write_b32 v44, v8 offset:{L_LS - L_MX}")
            self.stamp()

        def ev_vpair(m):
            u, p = m // 8, (m % 8) // 2
            ev, od = vV + 4 * (m - 1), vV + 4 * m
            for dw in range(8):
                sel = sSELHI if dw & 1 else sSELLO
                a(f"v_perm_b32 v{vK+32*u+4*dw+p}, v{od+(dw>>1)}, v{ev+(dw>>1)}, s{sel}")
            if p == 3:
                a("s_nop 1")
                for dw in range(8):
                    c = "0" if u == 0 else f"v[{vACC+4*dw}:{vACC+4*dw+3}]"
                    a(f"v_mfma_f32_16x16x32_bf16 v[{vACC+4*dw}:{vACC+4*dw+3}], v[{vK+32*u+4*dw}:{vK+32*u+4*dw+3}], v[{vP+4*u}:{vP+4*u+3}], {c}")

        def ev_gh():
            r = vGB + 8
            self.gather_check("GH", [r], gh, 8, lambda: None, skipmask=sHMASK, code=1)
            self.xg_quad(r)
            a(f"""
            v_cvt_pk_bf16_f32 v8, v{r}, v{r}
            v_and_b32 v8, 0xffff0000, v8
            v_lshlrev_b32 v9, 16, v{vB1}
            v_add_f32 v8, v8, v9
            v_cvt_pk_bf16_f32 v8, v8, v8
            v_and_b32 v8, 0xffff0000, v8
            v_max_f32 v8, 0, v8
            v_mul_f32 v8, v8, v8
            v_cvt_pk_bf16_f32 v8, v8, v8
            v_cndmask_b32 v8, 0, v8, s[{sHMASK}:{sHMASK+1}]
            ; k=4n+g ; pos = 32*(k>>5) + 4*(k&7) + ((k>>3)&3)
            v_lshl_add_u32 v9, v{vN}, 2, v{vG}
            v_and_b32 v10, 32, v9
            v_and_b32 v11, 7, v9
            v_lshl_add_u32 v10, v11, 2, v10
            v_bfe_u32 v11, v9, 3, 2
            v_add_u32 v10, v10, v11
            s_mul_i32 s67, s3, 272
            s_add_u32 s67, s67, {L_ACT}
            v_lshl_add_u32 v10, v10, 1, s67
            ds_write_b16 v10, v8
            """)
            a(f"""
            v_and_b32 v8, 7, v{vL}
            v_mul_u32_u24 v9, 528, v8
            v_lshl_add_u32 v9, v{vG}, 7, v9
            v_lshrrev_b32 v10, 3, v{vN}
            v_lshl_add_u32 v9, v10, 6, v9
            s_mul_i32 s67, s3, 4224
            v_add_u32 v40, s67, v9
            v_lshrrev_b32 v9, 5, v{vL}
            v_mul_u32_u24 v9, 528, v9
            v_and_b32 v10, 31, v{vL}
            v_lshl_add_u32 v9, v10, 4, v9
            s_mul_i32 s67, s3, 1056
            v_add_u32 v41, s67, v9
            v_mul_u32_u24 v9, 272, v8
            v_lshl_add_u32 v9, v{vG}, 4, v9
            v_add_u32 v42, {L_ACT}, v9
            v_lshrrev_b32 v9, 2, v{vN}                ; r'
            v_and_b32 v10, 3, v{vN}                   ; cc
            v_lshlrev_b32 v11, 1, v{vG}
            v_lshl_add_u32 v11, v9, 3, v11            ; row
            v_and_b32 v12, 1, v{vG}
            v_lshl_add_u32 v12, v9, 1, v12            ; f
            v_lshlrev_b32 v12, 1, v12
            s_lshl_b32 s67, s3, 2
            v_lshrrev_b32 v13, 1, v10
            v_add_u32 v13, s67, v13
            v_xor_b32 v13, v13, v12
            v_lshlrev_b32 v13, 4, v13
            v_lshl_add_u32 v13, v11, 9, v13
            v_and_b32 v10, 1, v10
            v_lshl_add_u32 v13, v10, 3, v13
            v_add_u32 v46, {L_W2}, v13
            v_xor_b32 v47, 32, v46
            v_lshl_add_u32 v9, v{vN}, 2, v{vG}
            s_mul_i32 s67, s3, 272
            s_add_u32 s67, s67, {L_ACT + 128}
            v_lshl_add_u32 v43, v9, 1, s67
            s_lshl_b32 s67, s2, 12
            s_lshl_b32 s68, s3, 10
            s_add_u32 s67, s67, s68
            s_add_u32 s67, s67, {WS_OP}
            v_add_u32 v62, s67, v{vLIN}
            s_lshl_b32 s67, s2, 7
            s_add_u32 s67, s67, {WS_ML}
            v_add_u32 v63, s67, v{vLIN}
            """)

        events = {"X1": ev_ln, "W13": ev_qh, "GQ1": ev_gq, "GH": ev_gh}
        lastk = "K15" if self.gq_after < 16 else "GQ1"
        i = 0
        while True:
            name = L[i][0]
            self.wait(name)
            while nxt[0] < len(L) and nxt[0] - (i + 1) < self.W: issue_next()
            if name == "V15":
                while nxt[0] < len(L): issue_next()
                self.stamp()
            if name in events: events[name]()
            if name == lastk: ev_qk()
            if name[0] == "V" and int(name[1:]) % 2 == 1: ev_vpair(int(name[1:]))
            if name == "V15": break
            i += 1

        a("s_nop 7")
        for dwl in range(4):
            for r in range(4):
                a(f"v_mov_b32_dpp v{vACC+4*dwl+r}, v{vACC+16+4*dwl+r} row_shr:8 row_mask:0xf bank_mask:0xc")
        for dwl in range(4):
            a(f"ds_write_b128 v40, v[{vACC+4*dwl}:{vACC+4*dwl+3}] offset:{16*dwl}")
        go = [f"buffer_load_dwordx4 v[{vGB+4*j}:{vGB+4*j+3}], v{vGO}, s[{sWS}:{sWS+3}], {'0' if j == 0 else 's'+str(sTMP)} offen sc1" for j in range(2)]
        go += [f"buffer_load_dwordx4 v[{vGB+8+4*j}:{vGB+8+4*j+3}], v{vGM}, s[{sWS}:{sWS+3}], 0 offen offset:{512*j} sc1" for j in range(2)]
        a(f"""
        s_mov_b32 s{sTMP}, 16384
        s_waitcnt lgkmcnt(0)
        s_barrier
        s_cmp_ge_u32 s3, 4
        s_cbranch_scc1 L_stats
        """)
        for p in range(8):
            a(f"ds_read_b128 v[{8+4*p}:{8+4*p+3}], v41 offset:{4224*p}")
        a("s_waitcnt lgkmcnt(0)")
        for i in range(16): a(f"v_add_f32 v{8+i}, v{8+i}, v{24+i}")
        for i in range(8): a(f"v_add_f32 v{8+i}, v{8+i}, v{16+i}")
        for i in range(4): a(f"v_add_f32 v{8+i}, v{8+i}, v{12+i}")
        self.tag(8, 8)
        a(f"""
        buffer_store_dwordx4 v[8:11], v62, s[{sWS}:{sWS+3}], 0 offen sc1
        s_branch L_pubdone
        """)
        a.label("L_stats")
        a(f"""
        s_cmp_lg_u32 s3, 4
        s_cbranch_scc1 L_pubdone
        ds_read_b128 v[12:15], v45 offset:{L_LS - L_MX}
        ds_read_b128 v[16:19], v45 offset:{L_LS - L_MX + 16}
        v_mov_b32 v8, v{vMCU}
        v_mov_b32 v10, 0
        v_mov_b32 v11, 0
        s_waitcnt lgkmcnt(0)
        v_add_f32 v12, v12, v16
        v_add_f32 v13, v13, v17
        v_add_f32 v14, v14, v18
        v_add_f32 v15, v15, v19
        v_add_f32 v12, v12, v14
        v_add_f32 v13, v13, v15
        v_add_f32 v9, v12, v13
        """)
        self.tag(8, 8)
        a(f"""
        s_mov_b64 exec, 0xff
        buffer_store_dwordx4 v[8:11], v63, s[{sWS}:{sWS+3}], 0 offen sc1
        s_mov_b64 exec, -1
        """)
        a.label("L_pubdone")
        self.stamp()
        for l in go: a(l)
        self.gather_check("GO", [vGB, vGB + 4, vGB + 8, vGB + 12], go, 20, lambda: a("s_waitcnt vmcnt(0)"), code=2)
        self.stamp()
        m0, l0, m1, l1 = vGB + 8, vGB + 9, vGB + 12, vGB + 13
        a(f"v_max_f32 v20, v{m0}, v{m1}")
        self.xg_all("v_max_f32", 20, 21)
        a(f"""
        v_sub_f32 v{m0}, v{m0}, v20
        v_sub_f32 v{m1}, v{m1}, v20
        v_mul_f32 v{m0}, s{sLOG2E}, v{m0}
        v_mul_f32 v{m1}, s{sLOG2E}, v{m1}
        v_exp_f32 v{m0}, v{m0}
        v_exp_f32 v{m1}, v{m1}
        s_nop 0
        v_mul_f32 v20, v{m0}, v{l0}
        v_fmac_f32 v20, v{m1}, v{l1}
        """)
        for i in range(4):
            a(f"v_mul_f32 v{vGB+i}, v{vGB+i}, v{m0}")
        for i in range(4):
            a(f"v_fmac_f32 v{vGB+i}, v{vGB+4+i}, v{m1}")
        self.xg_all("v_add_f32", 20, 21)
        a("v_rcp_f32 v20, v20")
        self.xg_quad(vGB)
        a(f"""
        v_mul_f32 v{vGB}, v{vGB}, v20
        v_cvt_pk_bf16_f32 v8, v{vGB}, v{vGB}
        ds_write_b16 v43, v8
        s_waitcnt lgkmcnt(0)
        s_barrier
        """)
        for ks in range(4):
            a(f"ds_read_b128 v[{8+4*ks}:{8+4*ks+3}], v42 offset:{64*ks}")
            for t in range(2):
                r = vK + 8 * ks + 4 * t
                for e in range(2):
                    a(f"ds_read_b64_tr_b16 v[{r+2*e}:{r+2*e+1}], v{46+t} offset:{16384*ks + 512*e}")
            if ks == 1: a("s_waitcnt lgkmcnt(5)")
        a("s_waitcnt lgkmcnt(0)")
        for ks in range(4):
            for t in range(2):
                r = vK + 8 * ks + 4 * t
                c = "0" if ks == 0 else f"v[{24+4*t}:{24+4*t+3}]"
                a(f"v_mfma_f32_16x16x32_bf16 v[{24+4*t}:{24+4*t+3}], v[{r}:{r+3}], v[{8+4*ks}:{8+4*ks+3}], {c}")
        a("s_nop 7")
        for i in range(4):
            a(f"v_cndmask_b32 v{24+i}, v{28+i}, v{24+i}, s[{sLO8}:{sLO8+1}]")
        self.tag(24, 24)
        gf = [f"buffer_load_dwordx4 v[{vGB}:{vGB+3}], v{vGF}, s[{sWS}:{sWS+3}], 0 offen sc1"]
        a(f"buffer_store_dwordx4 v[24:27], v{vFPUB}, s[{sWS}:{sWS+3}], 0 offen sc1")
        self.stamp()
        a(gf[0])
        a(f"""
        v_and_b32 v8, 7, v{vL}
        v_lshl_add_u32 v8, v8, 2, v{vG}
        s_lshl_b32 s67, s3, 2
        s_add_u32 s67, s67, {L_FR}
        v_lshl_add_u32 v8, v8, 5, s67
        v_and_b32 v9, 31, v{vL}
        v_lshlrev_b32 v9, 5, v9
        v_add_u32 v9, {L_FR}, v9
        v_lshlrev_b32 v{vXF}, 16, v{vXF}
        v_lshlrev_b32 v{vB2}, 16, v{vB2}
        v_add_f32 v{vXF}, v{vXF}, v{vB2}
        """)
        self.gather_check("GF", [vGB], gf, 20, lambda: a("s_waitcnt vmcnt(0)"), code=3)
        self.stamp()
        self.xg_quad(vGB)
        a(f"""
        s_nop 1
        v_add_f32_dpp v{vGB}, v{vGB}, v{vGB} row_ror:8 row_mask:0xf bank_mask:0xf
        ds_write_b32 v8, v{vGB}
        s_waitcnt lgkmcnt(0)
        s_barrier
        s_cmp_lg_u32 s3, 0
        s_cbranch_scc1 L_fin
        ds_read_b128 v[12:15], v9
        ds_read_b128 v[16:19], v9 offset:16
        s_waitcnt lgkmcnt(0)
        v_add_f32 v12, v12, v16
        v_add_f32 v13, v13, v17
        v_add_f32 v14, v14, v18
        v_add_f32 v15, v15, v19
        v_add_f32 v12, v12, v14
        v_add_f32 v13, v13, v15
        v_add_f32 v12, v12, v13
        v_add_f32 v12, v12, v{vXF}
        {"v_mul_f32 v12, 0x%08x, v12" % __import__("struct").unpack("<I", __import__("struct").pack("<f", 1.0 + self.pert))[0] if self.pert else ""}
        v_cvt_pk_bf16_f32 v12, v12, v12
        s_mov_b32 exec_hi, 0
        global_store_short v{vOW}, v12, s[{sOUTp}:{sOUTp+1}]
        s_cmp_lg_u32 s2, 0
        s_cbranch_scc1 L_fin
        s_mov_b64 exec, 1
        v_mov_b32 v12, s{sT+4}
        v_mov_b32 v13, 0
        buffer_store_dword v12, v13, s[{sWS}:{sWS+3}], 0 offen
        """)
        a.label("L_fin")
        if self.padto:
            a(f"""
            s_add_u32 s98, s98, {self.padto * 100}
            L_pad:
            s_memrealtime s[96:97]
            s_waitcnt lgkmcnt(0)
            s_sub_u32 s96, s96, s98
            s_cmp_lt_i32 s96, 0
            s_cbranch_scc1 L_pad
            """)
        if self.diag:
            self.stamp()
            n = self.nstamp
            a(f"""
            s_mov_b64 exec, 1
            s_lshl_b32 s67, s2, 3
            s_add_u32 s67, s67, s3
            s_mul_i32 s67, s67, {8 * (n + 1)}
            s_add_u32 s67, s67, {STAMP_OFF}
            s_add_u32 s68, s{sWS}, s67
            s_addc_u32 s69, s{sWS+1}, 0
            v_mov_b32 v8, 0
            s_waitcnt lgkmcnt(0)
            """)
            for i in range(n):
                a(f"v_mov_b32 v10, s{76+2*i}\nv_mov_b32 v11, s{77+2*i}\nglobal_store_dwordx2 v8, v[10:11], s[68:69] offset:{8*i}\ns_nop 1")
            a("s_getreg_b32 s70, hwreg(HW_REG_XCC_ID)\ns_getreg_b32 s71, hwreg(HW_REG_HW_ID)\ns_and_b32 s70, s70, 15\ns_and_b32 s71, s71, 0xffffff\ns_lshl_b32 s70, s70, 24\ns_or_b32 s70, s70, s71")
            a(f"v_mov_b32 v10, s75\nv_mov_b32 v11, s70\nglobal_store_dwordx2 v8, v[10:11], s[68:69] offset:{8*n}")
        a.label("L_end")
        a("s_endpgm")
        k = kernel_wrap(NAME + "_kernel", a.text(), vgpr=256)
        return file_wrap([f"; @launch grid=(256,1,1) block=(512,1,1) lds={L_END}"], [k])

if __name__ == "__main__":
    import argparse
    ap = argparse.ArgumentParser()
    ap.add_argument("out"); ap.add_argument("--diag", action="store_true")
    ap.add_argument("--W", type=int, default=6); ap.add_argument("--gq", type=int, default=14); ap.add_argument("--gh", type=int, default=8)
    ap.add_argument("--nont", action="store_true"); ap.add_argument("--retry", type=int, default=200000)
    ap.add_argument("--padto", type=int, default=0); ap.add_argument("--noremap", action="store_true"); ap.add_argument("--err", type=int, default=0); ap.add_argument("--pert", type=float, default=0.0)
    x = ap.parse_args()
    g = Gen(W=x.W, gq_after=x.gq, gh_after=x.gh, diag=x.diag, nt=not x.nont, retry=x.retry, padto=x.padto, remap=not x.noremap, err=x.err, pert=x.pert)
    open(x.out, "w").write(g.build())
    print("stamps", g.nstamp + 1 if x.diag else 0)
```
